```python
import torch

def _softmax(x, axis=-1):
    return torch.softmax(x, dim=axis)
def _gelu(x):
    return torch.nn.functional.gelu(x, approximate="tanh")
def _silu(x):
    return torch.nn.functional.silu(x)
def _sigmoid(x):
    return torch.sigmoid(x)
def _layernorm(x, axis=-1, eps=1e-5):
    m = x.mean(dim=axis, keepdim=True)
    v = x.var(dim=axis, keepdim=True, unbiased=False)
    return (x - m) / torch.sqrt(v + eps)
def _scatter_add(tgt, idx, src, axis=0):
    return tgt.clone().index_add_(axis, idx, src)
def _segment_sum(src, seg, n):
    out = torch.zeros((n,) + src.shape[1:], dtype=src.dtype)
    return out.index_add_(0, seg, src)
def _pad(x, pw):
    flat = tuple(v for pair in reversed(pw) for v in pair)
    return torch.nn.functional.pad(x, flat)

kernel_name = 'parallel_sum__linear_attn_block__mixer_s_mlp__prompt'

def setup_inputs():

    _w = (lambda a: (lambda t: t.to(torch.bfloat16) if t.is_floating_point() else t)(torch.as_tensor(a)))
    def _A_setup():
        B, S, D = 1, 2048, 512
        return {
            "x": _w((lambda *s: torch.randn(*s, dtype=torch.bfloat16) * 0.05)(B, S, D)),
            "wqkv": _w((lambda *s: torch.randn(*s, dtype=torch.bfloat16) * 0.4)(D, 3 * D)),
            "wo": _w((lambda *s: torch.randn(*s, dtype=torch.bfloat16) * 0.4)(D, D)),
        }
    _A_in = _A_setup()

    def _B_setup():
        B, S, D, F = 1, 2048, 512, 1376
        return {
            "x":  _w((lambda *s: torch.randn(*s, dtype=torch.bfloat16) * 0.05)(B, S, D)),
            "w1": _w((lambda *s: torch.randn(*s, dtype=torch.bfloat16) * 3.2)(D, D) * (D ** -0.5)),
            "w2": _w((lambda *s: torch.randn(*s, dtype=torch.bfloat16) * 3.2)(D, D) * (D ** -0.5)),
            "w3": _w((lambda *s: torch.randn(*s, dtype=torch.bfloat16) * 3.2)(D, F) * (D ** -0.5)),
            "w4": _w((lambda *s: torch.randn(*s, dtype=torch.bfloat16) * 3.2)(F, D) * (F ** -0.5)),
        }
    _B_in = _B_setup()

    return {
        "A_x": _A_in["x"],
        "A_wqkv": _A_in["wqkv"],
        "A_wo": _A_in["wo"],
        "B_x": _B_in["x"],
        "B_w1": _B_in["w1"],
        "B_w2": _B_in["w2"],
        "B_w3": _B_in["w3"],
        "B_w4": _B_in["w4"],
    }

def reference(A_x, A_wqkv, A_wo, B_x, B_w1, B_w2, B_w3, B_w4):
    def _A_ref(x, wqkv, wo):
        B, S, D = x.shape
        H = 32; Dh = D // H
        qkv = (lambda x, *d: x.permute(*d))((x @ wqkv).reshape(B, S, 3, H, Dh), 2, 0, 3, 1, 4)
        q, k, v = qkv[0], qkv[1], qkv[2]
        phi = lambda t: torch.where(t > 0, t + 1, torch.exp(t)) + 1e-6
        pq, pk = phi(q), phi(k)
        kv = torch.einsum("bhsd,bhse->bhde", pk, v)
        z = torch.einsum("bhsd->bhd", pk)
        num = torch.einsum("bhqd,bhde->bhqe", pq, kv)
        den = torch.einsum("bhqd,bhd->bhq", pq, z)[..., None] + 1e-6
        o = num / den
        return (lambda x, *d: x.permute(*d))(o, 0, 2, 1, 3).reshape(B, S, D) @ wo

    def _B_ref(x, w1, w2, w3, w4):
        B, S, D = x.shape
        h = _gelu(_layernorm(x, axis=-1) @ w1)
        c = D // 4
        g0 = _pad(h[:, :, 0*c:1*c], ((0, 0), (1, 0), (0, 0)))[:, :S, :]
        g1 = _pad(h[:, :, 1*c:2*c], ((0, 0), (0, 1), (0, 0)))[:, 1:, :]
        g2 = _pad(h[:, :, 2*c:3*c], ((0, 0), (2, 0), (0, 0)))[:, :S, :]
        g3 = _pad(h[:, :, 3*c:   ], ((0, 0), (0, 2), (0, 0)))[:, 2:, :]
        hs = torch.concatenate([g0, g1, g2, g3], axis=-1) @ w2
        x1 = x + hs
        h2 = _gelu(_layernorm(x1, axis=-1) @ w3) @ w4
        return x1 + h2

    x = A_x
    xn = _layernorm(x, axis=-1)
    return x + _A_ref(xn, A_wqkv, A_wo) + _B_ref(xn, B_w1, B_w2, B_w3, B_w4)
```

```python
import sys, math, struct

KNAME = "parallel_sum__linear_attn_block__mixer_s_mlp__prompt_kernel"

H_BASE   = 0x000000
X1_BASE  = 0x200000
O_BASE   = 0x400000
G_BASE   = 0x600000
KV_BASE  = 0xC00000
FL_BASE  = 0xC20000
ST1_BASE = 0xC40000
STAMP_BASE = 0xD00000
WS_SIZE  = 0x1000000
F_H, F_X1, F_O, F_G0, F_G1, F_G2, F_KV = range(7)

SLOT = 16384
XBASE = 5 * SLOT
XSTRIDE = 1040
SCR = XBASE + 64 * XSTRIDE
L_RS = SCR
L_ST1 = L_RS + 512
L_STAT = L_ST1
L_KV = L_ST1 + 8192
LDS_BYTES = 163840
assert L_KV + 6144 <= LDS_BYTES

S_X, S_QKV, S_WO, S_W1, S_W2, S_W3, S_W4, S_OUT, S_WS, S_DBG = [4 + 4 * k for k in range(10)]
sC, sJ, sW, sI, sN = 44, 45, 46, 47, 48
sM0w, sB1024, sBqkv, sB3, sB4 = 49, 50, 51, 52, 53
sAct, sActG = 54, 55
sOff, sT0, sT1, sTB = 57, 58, 59, 60
sOnes = 61
sMaskHi = 62
sC1 = 64
sOne = 66
sLog2e = 68
sEps6 = 70
sTime = 72
sTmo = 74
sHiMask = 75
sT2, sT3 = 76, 77
sRT0 = 78
sSelLo, sSelHi = 56, 3

vLane, vL16 = 1, 2
vWn, vWc, vA = 3, 6, 9
vXA, vTmpA, vFlagV, vOutOff, vStOff, vStamp = 12, 13, 14, 15, 16, 17
vM, vR, vR2, vMR, vM1, vR1 = 18, 20, 22, 24, 26, 28
vC0 = 30
vXres, vX1res = 32, 40
accA, accB = 48, 64
accF = accB
ring0, ring1 = 80, 96
vP0, vP1 = 112, 120
vBig = 48
lD1024, lD3072, lD2752, lHs, lTmp, lPoll, lPH, lPC, lPK, lPI, lExp, lT = 3, 4, 5, 6, 7, 8, 9, 10, 11, 12, 13, 20


class Chunk:
    def __init__(self, name, kind, flag=None, **kw):
        self.name = name; self.kind = kind; self.flag = flag; self.kw = kw
        self.slot = None; self.last_vm = None
        self.last_read = None; self.reads_done = False; self.emitted = False; self.arrived = False


class Stream:
    def __init__(self, name):
        self.name = name; self.L = []
        self.vm_seq = 0; self.vm_done = 0; self.lg_seq = 0; self.lg_done = 0
    def e(self, s):
        for l in s.strip("\n").split("\n"): self.L.append(l)
    def vmem(self, s):
        if self.vm_seq - self.vm_done >= 60:
            self.wait_vm(self.vm_seq - 52)
        self.e(s); self.vm_seq += 1
        return self.vm_seq
    def lds(self, s):
        self.e(s); self.lg_seq += 1
        return self.lg_seq
    def wait_vm(self, seq):
        if seq is None or seq <= self.vm_done: return
        self.e("  s_waitcnt vmcnt(%d)" % (self.vm_seq - seq)); self.vm_done = seq
    def wait_lg(self, seq):
        if seq is None or seq <= self.lg_done: return
        n = min(self.lg_seq - seq, 15)
        self.e("  s_waitcnt lgkmcnt(%d)" % n); self.lg_done = self.lg_seq - n
    def nop(self, n):
        while n > 0:
            k = min(n, 16); self.e("  s_nop %d" % (k - 1)); n -= k


def fbits(x): return "0x%08x" % struct.unpack("<I", struct.pack("<f", x))[0]


class Gen:
    def __init__(self, stop=None, stamps=False, opts=None):
        self.C = Stream("C"); self.D = Stream("D"); self.tail = []
        self.stop = stop; self.stamps = stamps; self.stamp_names = []; self.lstamp_names = []
        self.opts = opts or {}
        self.lab = 0
        self.free_slots = []; self.order = []; self.order_pos = 0
        self.fifo = []; self.blocked = []; self.flags_ok = set(); self.live = []
        self.pending_sig = []; self.trace = []; self.cur = "prologue"; self.nbar = 0

    def label(self, b):
        self.lab += 1; return "%s_%d" % (b, self.lab)
    def stamp(self, name):
        if not self.stamps: return
        k = len(self.stamp_names); self.stamp_names.append(name); assert k < 60
        self.C.e("  s_memtime s[%d:%d]\n  s_waitcnt lgkmcnt(0)\n  v_writelane_b32 v%d, s%d, %d" % (sTime, sTime + 1, vStamp, sTime, k))
        self.C.lg_done = self.C.lg_seq
    def lstamp(self, name):
        if not self.stamps: return
        k = len(self.lstamp_names); self.lstamp_names.append(name)
        if k >= 60: return
        self.D.e("  s_memtime s[%d:%d]\n  s_waitcnt lgkmcnt(0)\n  v_writelane_b32 v%d, s%d, %d" % (sTime, sTime + 1, vStamp, sTime, k))

    def make_atoms(self, ch):
        slot = ch.slot * SLOT; k = ch.kind; kw = ch.kw; at = []
        if k == "W":
            srd, vd, base, lit, stride = kw["srd"], kw["vd"], kw["base"], kw["lit"], kw["stride"]
            for t in range(8):
                if t == 0:
                    pre = "  s_add_u32 m0, s%d, %d\n  s_add_u32 s%d, s%d, %d" % (sM0w, slot, sOff, base, lit)
                else:
                    pre = "  s_addk_i32 m0, 1024\n  s_addk_i32 s%d, %d" % (sOff, 8 * stride)
                at.append(pre + "\n  buffer_load_dwordx4 v%d, s[%d:%d], s%d offen lds" % (vd, srd, srd + 3, sOff))
        elif k == "A":
            base, lits, vo = kw["base"], kw["lits"], kw.get("vo", vL16)
            for g in range(2):
                for t in range(4):
                    pre = ""
                    if t == 0:
                        if g == 0: pre = kw.get("pre", "")
                        pre += "  s_add_u32 m0, s%d, %d\n  s_add_u32 s%d, s%d, %d\n" % (sM0w, slot + 4096 * g, sOff, base, lits[g])
                    at.append(pre + "  buffer_load_dwordx4 v%d, s[%d:%d], s%d offen offset:%d sc1 lds" % (vo, S_WS, S_WS + 3, sOff, 1024 * t))
        else:
            raise ValueError(k)
        return at
    def assign(self):
        while self.free_slots and self.order_pos < len(self.order):
            ch = self.order[self.order_pos]; self.order_pos += 1
            ch.slot = self.free_slots.pop(0); self.live.append(ch)
            self.trace.append("%s: assign %s -> slot %d" % (self.cur, ch.name, ch.slot))
            if ch.flag is not None and ch.flag not in self.flags_ok: self.blocked.append(ch)
            else: self.fifo.append(ch)
    def unblock(self, flag):
        self.flags_ok.add(flag)
        first = [ch for ch in self.blocked if ch.flag == flag]
        self.blocked = [ch for ch in self.blocked if ch.flag != flag]
        self.fifo = first + self.fifo
    def pump(self, nchunks):
        while nchunks > 0 and self.fifo:
            ch = self.fifo.pop(0)
            for a in self.make_atoms(ch): ch.last_vm = self.D.vmem(a)
            ch.emitted = True
            self.trace.append("%s: issued %s" % (self.cur, ch.name))
            nchunks -= 1
    def pump_until(self, chunks):
        for ch in chunks:
            assert ch.slot is not None, "chunk %s has no slot at %s" % (ch.name, self.cur)
            assert ch not in self.blocked, "chunk %s still blocked at %s" % (ch.name, self.cur)
            while not ch.emitted: self.pump(1)

    def barrier(self, flush_sig=False, budget=1, need=(), dwait=None):
        C, D = self.C, self.D
        todo = [c for c in need if not c.arrived]
        self.pump_until(todo)
        if todo: D.wait_vm(max(c.last_vm for c in todo))
        if dwait is not None: D.wait_vm(dwait)
        fire = []
        for sg in list(self.pending_sig):
            sg["age"] += 1
            if flush_sig or sg["age"] > sg["delay"]:
                C.wait_vm(sg["seq"]); fire.append(sg); self.pending_sig.remove(sg)
        self.nbar += 1
        C.e("  s_barrier"); D.e("  s_barrier")
        self.lstamp("%s" % self.cur)
        for c in todo: c.arrived = True
        for sg in fire: self.fire_signal(sg)
        for ch in list(self.live):
            if ch.reads_done and ch.last_read is not None and ch.last_read <= C.lg_done:
                self.live.remove(ch); self.free_slots.append(ch.slot)
                self.trace.append("%s: free %s (slot %d)" % (self.cur, ch.name, ch.slot))
        self.assign()
        self.pump(budget)

    def signal_later(self, ftype, delay=0):
        self.pending_sig.append(dict(ftype=ftype, seq=self.C.vm_seq, delay=delay, age=0))
    def fire_signal(self, sg):
        C = self.C; ft = sg["ftype"]
        self.trace.append("%s: signal %d" % (self.cur, ft))
        a, b = (sJ, sC) if ft == F_KV else (sC, sJ)
        C.e("  s_lshl_b32 s%d, s%d, 7\n  s_lshl_b32 s%d, s%d, 2" % (sT2, a, sT3, b))
        C.e("  s_add_u32 s%d, s%d, s%d\n  s_add_u32 s%d, s%d, %d" % (sT2, sT2, sT3, sT2, sT2, FL_BASE + ft * 4096))
        C.e("  v_mov_b32 v%d, 1" % vTmpA)
        C.vmem("  buffer_store_dword v%d, v%d, s[%d:%d], s%d offen sc1" % (vTmpA, vFlagV, S_WS, S_WS + 3, sT2))
    def poll(self, what):
        D = self.D
        if what == "init":
            t = "  buffer_load_dword v%d, v%d, s[%d:%d], 0 offen sc1" % (lPoll, lPI, S_DBG, S_DBG + 3); cmp_ = "  v_cmp_eq_u32 vcc, v%d, v%d" % (lExp, lPoll)
        else:
            va = {F_H: lPH, F_KV: lPK}.get(what, lPC)
            D.e("  s_mov_b32 s%d, %d" % (sT2, FL_BASE + what * 4096))
            t = "  buffer_load_dword v%d, v%d, s[%d:%d], s%d offen sc1" % (lPoll, va, S_WS, S_WS + 3, sT2); cmp_ = "  v_cmp_eq_u32 vcc, 1, v%d" % lPoll
        seq = D.vmem(t)
        D.wait_vm(seq)
        slow = self.label("Lslow"); done = self.label("Ldone"); spin = self.label("Lspin")
        D.e(cmp_ + "\n  s_cmp_eq_u64 vcc, -1\n  s_cbranch_scc0 %s\n%s:" % (slow, done))
        self.tail.append("%s:\n  s_mov_b32 s%d, 4000\n%s:\n%s\n  s_waitcnt vmcnt(0)\n%s\n  s_cmp_eq_u64 vcc, -1\n  s_cbranch_scc1 %s\n"
                         "  s_sub_u32 s%d, s%d, 1\n  s_cmp_lg_u32 s%d, 0\n  s_cbranch_scc1 %s\n  s_branch %s"
                         % (slow, sTmo, spin, t, cmp_, done, sTmo, sTmo, sTmo, spin, done))
        self.trace.append("%s: poll %s" % (self.cur, what))
        self.lstamp("poll_%s" % what)
        if what != "init": self.unblock(what)

    @staticmethod
    def win(base_reg, addr): return base_reg + (addr >> 16), addr & 0xffff
    def read_w(self, ch, ks, order, dst):
        a = ch.slot * SLOT + ks * 2048
        reg, off = self.win(vWn if order == "nat" else vWc, a)
        second = 512 if order == "nat" else 1024
        self.C.lds("  ds_read_b64_tr_b16 v[%d:%d], v%d offset:%d" % (dst, dst + 1, reg, off))
        s = self.C.lds("  ds_read_b64_tr_b16 v[%d:%d], v%d offset:%d" % (dst + 2, dst + 3, reg, off + second))
        ch.last_read = s
        return s
    def read_a(self, ch, ks, dst):
        a = ch.slot * SLOT + ks * 1024
        reg, off = self.win(vA, a)
        s = self.C.lds("  ds_read_b128 %s, v%d offset:%d" % (dst, reg, off))
        ch.last_read = s
        return s

    def gemm(self, name, ksteps, hooks=None, budget=1):
        hooks = hooks or {}
        C = self.C
        LA = 2; n = len(ksteps); seqs = [None] * n
        for idx in range(-LA, n):
            j = idx + LA
            if j < n:
                k = ksteps[j]
                if k.get("chunks"):
                    self.cur = "%s.%d" % (name, k["step"])
                    hk = hooks.get(k["step"], [])
                    b = budget[k["step"]] if isinstance(budget, (list, tuple)) else budget
                    self.barrier(need=k["chunks"], budget=0 if hk else b)
                    if hk:
                        for fn in hk: fn()
                        self.pump(b)
                seqs[j] = k["reads"](j)
                for ch in k.get("done", []): ch.reads_done = True
            if idx >= 0:
                C.wait_lg(seqs[idx])
                ksteps[idx]["mfma"](idx)
        self.cur = name + ".end"

    def mfma(self, acc, a, b, first):
        c = "0" if first else "v[%d:%d]" % (acc, acc + 15)
        self.C.e("  v_mfma_f32_32x32x16_bf16 v[%d:%d], %s, %s, %s" % (acc, acc + 15, a, b, c))

    def hf_combine(self, regs, tmps):
        C = self.C
        for r, t in zip(regs, tmps): C.e("  v_mov_b32 v%d, v%d" % (t, r))
        C.nop(2)
        for r, t in zip(regs, tmps): C.e("  v_permlane32_swap_b32 v%d, v%d" % (r, t))
        C.nop(1)
        for r, t in zip(regs, tmps): C.e("  v_add_f32 v%d, v%d, v%d" % (r, r, t))
    def scale(self, acc, vr):
        for p in range(8):
            a = acc + 2 * p
            self.C.e("  v_pk_mul_f32 v[%d:%d], v[%d:%d], v[%d:%d] op_sel_hi:[1,0]" % (a, a + 1, a, a + 1, vr, vr + 1))
    def gelu_pack(self, acc, dst, T):
        e = self.C.e; P = range(8)
        for p in P: e("  v_pk_mul_f32 v[%d:%d], v[%d:%d], v[%d:%d]" % (T + 2 * p, T + 2 * p + 1, acc + 2 * p, acc + 2 * p + 1, acc + 2 * p, acc + 2 * p + 1))
        for p in P: e("  v_pk_fma_f32 v[%d:%d], v[%d:%d], s[%d:%d], v[%d:%d]" % (T + 2 * p, T + 2 * p + 1, T + 2 * p, T + 2 * p + 1, sC1, sC1 + 1, vC0, vC0 + 1))
        for p in P: e("  v_pk_mul_f32 v[%d:%d], v[%d:%d], v[%d:%d]" % (T + 2 * p, T + 2 * p + 1, T + 2 * p, T + 2 * p + 1, acc + 2 * p, acc + 2 * p + 1))
        for q in range(16): e("  v_exp_f32 v%d, v%d" % (T + q, T + q))
        for p in P: e("  v_pk_add_f32 v[%d:%d], v[%d:%d], s[%d:%d]" % (T + 2 * p, T + 2 * p + 1, T + 2 * p, T + 2 * p + 1, sOne, sOne + 1))
        for q in range(16): e("  v_rcp_f32 v%d, v%d" % (T + q, T + q))
        for p in P: e("  v_pk_mul_f32 v[%d:%d], v[%d:%d], v[%d:%d]" % (acc + 2 * p, acc + 2 * p + 1, acc + 2 * p, acc + 2 * p + 1, T + 2 * p, T + 2 * p + 1))
        for p in P: e("  v_cvt_pk_bf16_f32 v%d, v%d, v%d" % (dst + p, acc + 2 * p, acc + 2 * p + 1))
    def phi_pack(self, acc, dst, T):
        e = self.C.e; P = range(8)
        for p in P: e("  v_pk_mul_f32 v[%d:%d], v[%d:%d], s[%d:%d]" % (T + 2 * p, T + 2 * p + 1, acc + 2 * p, acc + 2 * p + 1, sLog2e, sLog2e + 1))
        for q in range(16): e("  v_min_f32 v%d, 0, v%d" % (T + q, T + q))
        for q in range(16): e("  v_exp_f32 v%d, v%d" % (T + q, T + q))
        for q in range(16): e("  v_max_f32 v%d, 0, v%d" % (acc + q, acc + q))
        for p in P: e("  v_pk_add_f32 v[%d:%d], v[%d:%d], v[%d:%d]" % (acc + 2 * p, acc + 2 * p + 1, acc + 2 * p, acc + 2 * p + 1, T + 2 * p, T + 2 * p + 1))
        for p in P: e("  v_pk_add_f32 v[%d:%d], v[%d:%d], s[%d:%d]" % (acc + 2 * p, acc + 2 * p + 1, acc + 2 * p, acc + 2 * p + 1, sEps6, sEps6 + 1))
        for p in P: e("  v_cvt_pk_bf16_f32 v%d, v%d, v%d" % (dst + p, acc + 2 * p, acc + 2 * p + 1))
    def store_frags(self, src, base, tbstride, ks_expr):
        C = self.C; mul_j, add = ks_expr
        C.e("  s_mul_i32 s%d, s%d, %d" % (sT0, sTB, tbstride))
        C.e("  s_mul_i32 s%d, s%d, %d" % (sT1, sJ, mul_j * 1024))
        C.e("  s_add_u32 s%d, s%d, s%d" % (sT0, sT0, sT1))
        C.e("  s_lshl_b32 s%d, s%d, 11" % (sT1, sN))
        C.e("  s_add_u32 s%d, s%d, s%d" % (sT0, sT0, sT1))
        C.e("  s_add_u32 s%d, s%d, %d" % (sT0, sT0, base + add * 1024))
        C.vmem("  buffer_store_dwordx4 v[%d:%d], v%d, s[%d:%d], s%d offen sc1" % (src, src + 3, vL16, S_WS, S_WS + 3, sT0))
        return C.vmem("  buffer_store_dwordx4 v[%d:%d], v%d, s[%d:%d], s%d offen offset:1024 sc1" % (src + 4, src + 7, vL16, S_WS, S_WS + 3, sT0))
    def finish_stats(self, vs, vm, vr):
        self.C.e("""  v_mul_f32 v{m}, 0x3b000000, v{s}
  v_mul_f32 v{q}, 0x3b000000, v{q}
  v_fma_f32 v{q}, -v{m}, v{m}, v{q}
  v_max_f32 v{q}, 0, v{q}
  v_add_f32 v{s}, 0x3727c5ac, v{q}
  v_rsq_f32 v{r}, v{s}""".format(m=vm, s=vs, q=vs + 1, r=vr))
        self.C.nop(1)
    def center(self, vneg, tmp, write):
        e = self.C.e
        for q in range(16):
            r = vBig + 4 * q; t = tmp + 8 * (q & 1)
            for d in range(4):
                e("  v_dot2_f32_bf16 v%d, v%d, s%d, v%d" % (t + 2 * d, r + d, sSelLo, vneg))
                e("  v_dot2_f32_bf16 v%d, v%d, s%d, v%d" % (t + 2 * d + 1, r + d, sSelHi, vneg))
            if q > 0:
                self._cvt4(q - 1, tmp); write(q - 1)
        self.C.nop(3)
        self._cvt4(15, tmp); write(15)
    def _cvt4(self, q, tmp):
        r = vBig + 4 * q; t = tmp + 8 * (q & 1)
        for d in range(4):
            self.C.e("  v_cvt_pk_bf16_f32 v%d, v%d, v%d" % (r + d, t + 2 * d, t + 2 * d + 1))

    def end_here(self):
        self.pump(100)
        self.C.e("  s_waitcnt vmcnt(0) lgkmcnt(0)")
        self.D.e("  s_waitcnt vmcnt(0) lgkmcnt(0)")
        self.finish()
    def finish(self):
        for S in (self.C, self.D):
            if self.stamps:
                S.e("  s_memrealtime s[%d:%d]\n  s_waitcnt lgkmcnt(0)" % (sTime, sTime + 1))
                S.e("  v_writelane_b32 v%d, s%d, 62\n  v_writelane_b32 v%d, s%d, 63" % (vStamp, sRT0, vStamp, sTime))
                S.e("  s_lshl_b32 s%d, s2, 11\n  s_lshl_b32 s%d, s%d, 8\n  s_add_u32 s%d, s%d, s%d\n  s_add_u32 s%d, s%d, %d"
                    % (sT0, sT1, sW, sT0, sT0, sT1, sT0, sT0, STAMP_BASE))
                S.e("  v_lshlrev_b32 v%d, 2, v%d" % (vTmpA, vLane))
                S.e("  buffer_store_dword v%d, v%d, s[%d:%d], s%d offen" % (vStamp, vTmpA, S_WS, S_WS + 3, sT0))
            S.e("  s_endpgm")

    def build(self):
        C, D = self.C, self.D
        e = C.e; d = D.e; o = self.opts
        self.head = Stream("H"); h = self.head.e
        def W(name, srd, vd, base, stride, col, k0):
            return Chunk(name, "W", srd=srd, vd=vd, base=base, stride=stride, lit=col + k0 * stride)
        W1 = [W("W1_%d" % q, S_W1, lD1024, sB1024, 1024, 0, 128 * q) for q in range(4)]
        WK = [W("K_%d" % q, S_QKV, lD3072, sBqkv, 3072, 1024, 128 * q) for q in range(4)]
        WV = [W("V_%d" % q, S_QKV, lD3072, sBqkv, 3072, 2048, 128 * q) for q in range(4)]
        WQ = [W("Q_%d" % q, S_QKV, lD3072, sBqkv, 3072, 0, 128 * q) for q in range(4)]
        W2 = [W("W2_%d" % q, S_W2, lD1024, sB1024, 1024, 0, 128 * q) for q in range(4)]
        WO = [W("WO_%d" % q, S_WO, lD1024, sB1024, 1024, 0, 128 * q) for q in range(4)]
        W3 = [[W("W3_%d_%d" % (p, q), S_W3, lD2752, sB3, 2752, 128 * p, 128 * q) for q in range(4)] for p in range(3)]
        W4 = [[W("W4_%d_%d" % (p, pp), S_W4, lD1024, sB4, 1024, 0, 384 * pp + 64 * p) for pp in range(4)] for p in range(3)]
        shifts = [1, -1, 2, -2]
        def hpre(q):
            return ("  v_and_b32 v{t}, 31, v{l}\n  s_lshl_b32 s{a}, s{tb}, 5\n  s_add_u32 s{a}, s{a}, {dd}\n  v_add_u32 v{t}, s{a}, v{t}\n"
                    "  v_cmp_gt_u32 vcc, 0x800, v{t}\n"
                    "  v_lshrrev_b32 v{h}, 5, v{t}\n  v_lshlrev_b32 v{h}, 15, v{h}\n  v_and_b32 v{t}, 31, v{t}\n  v_lshl_add_u32 v{h}, v{t}, 4, v{h}\n"
                    "  v_and_b32 v{t}, 32, v{l}\n  v_lshl_add_u32 v{h}, v{t}, 4, v{h}\n  v_mov_b32 v{t}, 0x80000000\n  v_cndmask_b32 v{h}, v{t}, v{h}, vcc\n"
                    "  s_mov_b32 s{a}, 0\n"
                    ).format(t=lTmp, l=vLane, a=sT3, tb=sTB, dd=(-shifts[q]) & 0xffffffff, h=lHs)
        HC = [Chunk("H_%d" % q, "A", flag=F_H, base=sT3, lits=[H_BASE + q * 8192, H_BASE + q * 8192 + 4096], vo=lHs, pre=hpre(q)) for q in range(4)]
        X1C = [Chunk("X1_%d" % q, "A", flag=F_X1, base=sAct, lits=[X1_BASE + q * 8192, X1_BASE + q * 8192 + 4096]) for q in range(4)]
        OC = [Chunk("O_%d" % q, "A", flag=F_O, base=sAct, lits=[O_BASE + q * 8192, O_BASE + q * 8192 + 4096]) for q in range(4)]
        GC = [[Chunk("G_%d_%d" % (p, pp), "A", flag=F_G0 + p, base=sActG,
                     lits=[G_BASE + (24 * pp + 4 * p) * 1024, G_BASE + (24 * pp + 12 + 4 * p) * 1024]) for pp in range(4)] for p in range(3)]
        order = W1 + [WK[0], WV[0]]
        for q in range(1, 4): order += [WK[q], WV[q]]
        for q in range(4): order += [W2[q], HC[q]]
        order += WQ
        order += X1C + W3[0] if o.get("x1first", 1) else W3[0] + X1C
        order += W3[1] + W3[2]
        for q in range(4): order += [WO[q], OC[q]]
        for p in range(3):
            for pp in range(4): order += [W4[p][pp], GC[p][pp]]
        self.order = order
        self.free_slots = [0, 1, 2, 3, 4]

        h("  s_cmp_ge_u32 s2, 0x100\n  s_cbranch_scc1 Lexit")
        if self.stamps: h("  s_memrealtime s[%d:%d]" % (sRT0, sRT0 + 1))
        h("  s_load_dwordx16 s[80:95], s[0:1], 0\n  s_load_dwordx4 s[96:99], s[0:1], 64\n  s_load_dwordx2 s[100:101], s[0:1], 80")
        h("""  s_and_b32 s{t0}, s2, 7
  s_lshr_b32 s{t1}, s2, 3
  s_lshr_b32 s{c}, s{t1}, 3
  s_lshl_b32 s{t0}, s{t0}, 2
  s_add_u32 s{c}, s{c}, s{t0}
  s_and_b32 s{j}, s{t1}, 7
  v_lshrrev_b32 v{ta}, 6, v0
  v_and_b32 v{l}, 63, v0
  v_readfirstlane_b32 s{w}, v{ta}
  v_lshlrev_b32 v{l16}, 4, v{l}
  s_waitcnt lgkmcnt(0)""".format(t0=sT0, t1=sT1, c=sC, j=sJ, ta=vTmpA, l=vLane, w=sW, l16=vL16))
        sizes = {S_X: (80, 2048 * 1024), S_QKV: (82, 512 * 3072), S_WO: (84, 512 * 1024), S_W1: (88, 512 * 1024), S_W2: (90, 512 * 1024),
                 S_W3: (92, 512 * 2752), S_W4: (94, 1376 * 1024), S_OUT: (96, 2048 * 1024), S_DBG: (98, 256), S_WS: (100, WS_SIZE)}
        for srd in (S_X, S_W1, S_WS, S_QKV, S_DBG, S_W2, S_W3, S_WO, S_W4, S_OUT):
            p, sz = sizes[srd]
            h("  s_mov_b32 s%d, s%d\n  s_mov_b32 s%d, s%d\n  s_mov_b32 s%d, %d\n  s_mov_b32 s%d, 0x00020000" % (srd, p, srd + 1, p + 1, srd + 2, sz, srd + 3))
        if self.stamps: h("  v_mov_b32 v%d, 0" % vStamp)
        h("  s_cmp_ge_u32 s%d, 4\n  s_cbranch_scc1 Lloader" % sW)

        d("""  s_sub_u32 s{i}, s{w}, 4
  s_lshl_b32 s{tb}, s{c}, 1
  s_add_u32 s{tb}, s{tb}, s{i}
  s_lshl_b32 s{o}, s{c}, 16
  s_lshl_b32 s{t0}, s{i}, 15
  s_add_u32 s{o}, s{o}, s{t0}
  s_mul_i32 s{t0}, s{i}, {r32}
  s_add_u32 m0, s{t0}, {xb}""".format(i=sI, w=sW, tb=sTB, c=sC, o=sOff, t0=sT0, r32=32 * XSTRIDE, xb=XBASE))
        x_seq = None
        for t in range(32):
            pre = "  s_nop 0\n" if t == 0 else "  s_addk_i32 m0, %d\n  s_addk_i32 s%d, 1024\n" % (XSTRIDE, sOff)
            x_seq = D.vmem(pre + "  buffer_load_dwordx4 v%d, s[%d:%d], s%d offen lds" % (vL16, S_X, S_X + 3, sOff))
            if t == 1:
                d("""  s_lshl_b32 s{m0w}, s{i}, 13
  s_lshl_b32 s{t0}, s{j}, 7
  s_lshl_b32 s{b1}, s{i}, 16
  s_add_u32 s{b1}, s{b1}, s{t0}
  s_mul_i32 s{bq}, s{i}, {q64}
  s_add_u32 s{bq}, s{bq}, s{t0}
  s_mul_i32 s{b3}, s{i}, {w64}
  s_mul_i32 s{t1}, s{j}, 384
  s_add_u32 s{b3}, s{b3}, s{t1}
  s_mul_i32 s{b4}, s{i}, {f192}
  s_add_u32 s{b4}, s{b4}, s{t0}
  s_lshl_b32 s{act}, s{tb}, 15
  s_mul_i32 s{actg}, s{tb}, 98304
  v_lshrrev_b32 v{a}, 3, v{l}
  v_and_b32 v{b}, 7, v{l}
  v_lshrrev_b32 v{c}, 1, v{a}
  v_and_b32 v{c}, 1, v{c}
  v_lshlrev_b32 v{c}, 2, v{c}
  v_xor_b32 v{b}, v{b}, v{c}
  v_lshlrev_b32 v{b}, 4, v{b}
  v_lshl_add_u32 v{d1}, v{a}, 10, v{b}
  v_mul_u32_u24 v{d2}, 0xc00, v{a}
  v_add_u32 v{d2}, v{d2}, v{b}
  v_mul_u32_u24 v{d3}, 0xac0, v{a}
  v_add_u32 v{d3}, v{d3}, v{b}""".format(m0w=sM0w, i=sI, t0=sT0, t1=sT1, j=sJ, b1=sB1024, bq=sBqkv, q64=64 * 3072, b3=sB3, w64=64 * 2752, b4=sB4,
                                          f192=192 * 1024, act=sAct, tb=sTB, actg=sActG, a=lT, b=lT + 1, c=lT + 2, l=vLane, d1=lD1024, d2=lD3072, d3=lD2752))
        self.assign(); self.pump(1)
        if o.get("codepf", 1):
            d("""  s_getpc_b64 s[{p}:{p1}]
Lpc_here:
  s_sub_u32 s{p}, s{p}, (Lpc_here - {kn})
  s_subb_u32 s{p1}, s{p1}, 0
  s_lshr_b32 s{t0}, s2, 3
  s_lshl_b32 s{t0}, s{t0}, 5
  s_lshl_b32 s{t1}, s{i}, 4
  s_add_u32 s{t0}, s{t0}, s{t1}
  v_and_b32 v{ta}, 15, v{l}
  v_add_u32 v{ta}, s{t0}, v{ta}
  v_lshlrev_b32 v{ta}, 7, v{ta}
  v_min_u32 v{ta}, CODE_PF_MAX, v{ta}
  global_load_dword v{dd}, v{ta}, s[{p}:{p1}]""".format(p=sTime, p1=sTime + 1, kn=KNAME, ta=lTmp, l=vLane, t0=sT0, t1=sT1, i=sI, dd=lT + 8))
            D.vm_seq += 1
        d("""  v_subrev_u32 v{tid}, 256, v0
  v_lshlrev_b32 v{a}, 12, v{tid}
  s_lshl_b32 s{t0}, s{c}, 7
  s_lshl_b32 s{t1}, s{j}, 2
  s_add_u32 s{t0}, s{t0}, s{t1}
  s_lshl_b32 s{t2}, s{j}, 7
  s_lshl_b32 s{t3}, s{c}, 2
  s_add_u32 s{t2}, s{t2}, s{t3}
  v_mov_b32 v{b}, s{t0}
  v_mov_b32 v{c_}, s{t2}
  v_cmp_eq_u32 vcc, 6, v{tid}
  v_mov_b32 v{oob}, 0x80000000
  v_mov_b32 v{z}, 0
  v_cndmask_b32 v{b}, v{b}, v{c_}, vcc
  v_add_u32 v{a}, v{a}, v{b}
  v_cmp_gt_u32 vcc, 7, v{tid}
  s_mov_b32 s{t0}, {fl}
  s_nop 0
  v_cndmask_b32 v{a}, v{oob}, v{a}, vcc""".format(tid=lT + 7, a=lT, b=lT + 1, c_=lT + 2, oob=lT + 3, z=lT + 4, t0=sT0, t1=sT1, t2=sT2, t3=sT3, c=sC, j=sJ, fl=FL_BASE))
        D.vmem("  buffer_store_dword v%d, v%d, s[%d:%d], s%d offen sc1" % (lT + 4, lT, S_WS, S_WS + 3, sT0))
        d("""  v_lshlrev_b32 v{a}, 2, v{tid}
  v_cmp_gt_u32 vcc, 64, v{tid}
  s_lshl_b32 s{t0}, s{j}, 13
  s_lshl_b32 s{t1}, s{c}, 8
  s_add_u32 s{t0}, s{t0}, s{t1}
  s_add_u32 s{t0}, s{t0}, {kv}
  v_cndmask_b32 v{a}, v{oob}, v{a}, vcc
  v_cmp_eq_u32 vcc, 0, v{tid}
  v_mov_b32 v{b}, 0""".format(tid=lT + 7, a=lT + 5, oob=lT + 3, t0=sT0, t1=sT1, j=sJ, c=sC, kv=KV_BASE, b=lT + 6))
        init_seq = D.vmem("  buffer_store_dword v%d, v%d, s[%d:%d], s%d offen sc1" % (lT + 4, lT + 5, S_WS, S_WS + 3, sT0))
        d("  v_cndmask_b32 v%d, v%d, v%d, vcc" % (vFlagV, lT + 3, lT + 6))
        self.pump(2)
        d("""  v_and_b32 v{pc}, 7, v{l}
  v_lshlrev_b32 v{pc}, 2, v{pc}
  v_and_b32 v{m}, 31, v{l}
  v_lshlrev_b32 v{pk}, 2, v{m}
  s_lshl_b32 s{t1}, s{j}, 7
  v_add_u32 v{pk}, s{t1}, v{pk}
  v_lshrrev_b32 v{x}, 3, v{l}
  v_min_u32 v{x}, 2, v{x}
  v_add_u32 v{x}, s{c}, v{x}
  v_max_u32 v{x}, 1, v{x}
  v_min_u32 v{x}, 32, v{x}
  v_subrev_u32 v{x}, 1, v{x}
  v_lshl_add_u32 v{ph}, v{x}, 7, v{pc}
  s_lshl_b32 s{t0}, s{c}, 7
  v_add_u32 v{pc}, s{t0}, v{pc}
  v_lshlrev_b32 v{pi}, 2, v{l}
  v_and_b32 v{x}, 1, v{l}
  v_cmp_eq_u32 vcc, 0, v{x}
  v_mov_b32 v{x}, 0
  v_mov_b32 v{y}, 8
  v_cndmask_b32 v{ex}, v{x}, v{y}, vcc""".format(pc=lPC, pk=lPK, ph=lPH, pi=lPI, ex=lExp, l=vLane, m=lT, x=lT + 1, y=lT + 2, t0=sT0, t1=sT1, j=sJ, c=sC))
        self.pump(2)

        e("""  s_and_b32 s{i}, s{w}, 1
  s_lshr_b32 s{n}, s{w}, 1
  s_lshl_b32 s{tb}, s{c}, 1
  s_add_u32 s{tb}, s{tb}, s{i}
  v_and_b32 v{a}, 15, v{l}
  v_lshrrev_b32 v{r}, 2, v{a}
  v_and_b32 v{c_}, 3, v{l}
  v_bfe_u32 v{g}, v{l}, 4, 1
  v_lshrrev_b32 v{hf}, 5, v{l}
  v_lshrrev_b32 v{p}, 1, v{c_}
  v_lshl_add_u32 v{p}, v{g}, 1, v{p}
  s_lshl_b32 s{t0}, s{n}, 2
  v_add_u32 v{p}, s{t0}, v{p}
  v_lshrrev_b32 v{x}, 1, v{r}
  v_lshlrev_b32 v{x}, 2, v{x}
  v_xor_b32 v{p}, v{p}, v{x}
  v_and_b32 v{x}, 1, v{c_}
  v_lshlrev_b32 v{x}, 3, v{x}
  v_lshl_add_u32 v{p}, v{p}, 4, v{x}
  v_lshl_add_u32 v{x}, v{hf}, 3, v{r}
  v_lshl_add_u32 v{wn}, v{x}, 7, v{p}
  v_lshl_add_u32 v{x}, v{hf}, 2, v{r}
  v_lshl_add_u32 v{wc}, v{x}, 7, v{p}
  v_add_u32 v{wn1}, 0x10000, v{wn}
  v_add_u32 v{wn2}, 0x20000, v{wn}
  v_add_u32 v{wc1}, 0x10000, v{wc}
  v_add_u32 v{wc2}, 0x20000, v{wc}
  s_lshl_b32 s{t0}, s{i}, 13
  v_add_u32 v{a0}, s{t0}, v{l16}
  v_add_u32 v{a1}, 0x10000, v{a0}
  v_add_u32 v{a2}, 0x20000, v{a0}
  v_and_b32 v{m}, 31, v{l}
  s_lshl_b32 s{t0}, s{i}, 5
  v_add_u32 v{x}, s{t0}, v{m}
  v_mul_u32_u24 v{xa}, {xs}, v{x}
  v_lshl_add_u32 v{xa}, v{hf}, 4, v{xa}
  v_add_u32 v{xa}, {xb}, v{xa}
  s_lshl_b32 s{t0}, s{tb}, 15
  s_lshl_b32 s{t1}, s{j}, 7
  s_add_u32 s{t0}, s{t0}, s{t1}
  s_lshl_b32 s{t1}, s{n}, 6
  s_add_u32 s{t0}, s{t0}, s{t1}
  v_lshl_add_u32 v{oo}, v{m}, 10, s{t0}
  v_lshl_add_u32 v{oo}, v{hf}, 4, v{oo}
  v_lshlrev_b32 v{st}, 3, v{m}
  v_mov_b32 v{x}, 0x80000000
  v_cmp_gt_u32 vcc, 32, v{l}
  v_mov_b32 v{y}, 0
  s_nop 0
  v_cndmask_b32 v{st}, v{x}, v{st}, vcc
  v_cmp_eq_u32 vcc, 0, v0
  s_nop 1
  v_cndmask_b32 v{fv}, v{x}, v{y}, vcc""".format(i=sI, w=sW, n=sN, tb=sTB, c=sC, j=sJ, a=vBig, r=vBig + 1, c_=vBig + 2, g=vBig + 3, hf=vBig + 4, p=vBig + 5,
                                                 x=vBig + 6, m=vBig + 7, y=vBig + 8, l=vLane, t0=sT0, t1=sT1, wn=vWn, wn1=vWn + 1, wn2=vWn + 2, wc=vWc, wc1=vWc + 1,
                                                 wc2=vWc + 2, a0=vA, a1=vA + 1, a2=vA + 2, l16=vL16, xa=vXA, xs=XSTRIDE, xb=XBASE, oo=vOutOff, st=vStOff, fv=vFlagV))
        c0 = -2.0 * math.sqrt(2.0 / math.pi) * math.log2(math.e); c1 = c0 * 0.044715
        e("""  s_mov_b32 s{on}, 0x3f803f80
  s_mov_b32 s{sl}, 0x00003f80
  s_mov_b32 s{sh}, 0x3f800000
  s_mov_b32 s{mh}, 0xffff0000
  s_mov_b32 s{mh1}, 0xffff0000
  s_mov_b32 s{c1}, {c1v}
  s_mov_b32 s{c11}, {c1v}
  s_mov_b32 s{o}, 1.0
  s_mov_b32 s{o1}, 1.0
  s_mov_b32 s{lg}, {lgv}
  s_mov_b32 s{lg1}, {lgv}
  s_mov_b32 s{ep}, {epv}
  s_mov_b32 s{ep1}, {epv}
  s_mov_b32 s{hm}, 0xffff0000
  v_mov_b32 v{c0}, {c0v}
  v_mov_b32 v{c01}, {c0v}""".format(on=sOnes, sl=sSelLo, sh=sSelHi, mh=sMaskHi, mh1=sMaskHi + 1, c1=sC1, c11=sC1 + 1, c1v=fbits(c1), o=sOne, o1=sOne + 1,
                                    lg=sLog2e, lg1=sLog2e + 1, lgv=fbits(math.log2(math.e)), ep=sEps6, ep1=sEps6 + 1, epv=fbits(1e-6), hm=sHiMask,
                                    c0=vC0, c01=vC0 + 1, c0v=fbits(c0)))
        self.stamp("setup")

        self.cur = "x_in"
        self.barrier(dwait=x_seq, budget=0)
        D.wait_vm(init_seq)
        d("  v_mov_b32 v%d, 1\n  s_lshl_b32 s%d, s%d, 3" % (lTmp, sT0, sC))
        D.vmem("  buffer_atomic_add v%d, v%d, s[%d:%d], s%d offen sc1" % (lTmp, vFlagV, S_DBG, S_DBG + 3, sT0))
        self.stamp("x_in")
        e("  s_lshl_b32 s%d, s%d, 9\n  v_add_u32 v%d, s%d, v%d" % (sT0, sN, vTmpA, sT0, vXA))
        S0 = vP0
        tseq = []
        for q in range(16):
            tseq.append(C.lds("  ds_read_b128 v[%d:%d], v%d offset:%d" % (vBig + 4 * q, vBig + 4 * q + 3, vTmpA, 32 * q)))
            if q == 7:
                e("  v_mov_b32 v%d, 0\n  v_mov_b32 v%d, 0\n  v_mov_b32 v%d, 0\n  v_mov_b32 v%d, 0" % (S0, S0 + 1, S0 + 2, S0 + 3))
        e("""  s_lshl_b32 s{t0}, s{j}, 7
  s_lshl_b32 s{t1}, s{n}, 6
  s_add_u32 s{t0}, s{t0}, s{t1}
  v_lshrrev_b32 v{x}, 5, v{l}
  v_lshlrev_b32 v{x}, 3, v{x}
  v_sub_u32 v{y}, v{xa}, v{x}
  v_add_u32 v{y}, s{t0}, v{y}""".format(t0=sT0, t1=sT1, j=sJ, n=sN, x=S0 + 6, y=S0 + 7, l=vLane, xa=vXA))
        for q in range(16):
            C.wait_lg(tseq[q])
            for dd in range(4):
                r = vBig + 4 * q + dd; k = 2 * (dd & 1)
                e("  v_dot2c_f32_bf16 v%d, s%d, v%d\n  v_dot2c_f32_bf16 v%d, v%d, v%d" % (S0 + k, sOnes, r, S0 + k + 1, r, r))
            if q == 3:
                for g in range(4):
                    C.lds("  ds_read_b64 v[%d:%d], v%d offset:%d" % (vXres + 2 * g, vXres + 2 * g + 1, S0 + 7, 16 * g))
        C.nop(3)
        e("  v_pk_add_f32 v[%d:%d], v[%d:%d], v[%d:%d]" % (S0, S0 + 1, S0, S0 + 1, S0 + 2, S0 + 3))
        self.hf_combine([S0, S0 + 1], [S0 + 2, S0 + 3])
        e("""  s_lshl_b32 s{t0}, s{i}, 1
  s_add_u32 s{t0}, s{t0}, s{n}
  s_lshl_b32 s{t0}, s{t0}, 8
  s_add_u32 s{t0}, s{t0}, {st}
  v_and_b32 v{x}, 31, v{l}
  v_lshl_add_u32 v{y}, v{x}, 3, s{t0}
  s_lshl_b32 s{t0}, s{i}, 9
  s_add_u32 s{t0}, s{t0}, {st}
  v_lshl_add_u32 v{z}, v{x}, 3, s{t0}""".format(t0=sT0, i=sI, n=sN, st=L_STAT, x=S0 + 6, y=S0 + 8, z=S0 + 9, l=vLane))
        s_ = C.lds("  ds_write_b64 v%d, v[%d:%d]" % (S0 + 8, S0, S0 + 1))
        C.wait_lg(s_)
        self.cur = "xstat"
        self.barrier(budget=0)
        C.lds("  ds_read_b64 v[%d:%d], v%d" % (S0, S0 + 1, S0 + 9))
        s_ = C.lds("  ds_read_b64 v[%d:%d], v%d offset:256" % (S0 + 2, S0 + 3, S0 + 9))
        C.wait_lg(s_)
        e("  v_pk_add_f32 v[%d:%d], v[%d:%d], v[%d:%d]" % (S0, S0 + 1, S0, S0 + 1, S0 + 2, S0 + 3))
        self.finish_stats(S0, vM, vR)
        e("""  v_mul_f32 v{q}, v{q}, v{r}
  v_mul_f32 v{q}, v{q}, v{r}
  v_add_f32 v{q}, 0x3727c5ac, v{q}
  v_rsq_f32 v{q}, v{q}
  v_mul_f32 v{mr}, v{m}, v{r}
  v_mul_f32 v{r2}, v{r}, v{q}
  v_sub_f32 v{ng}, 0, v{m}""".format(q=S0 + 1, r=vR, mr=vMR, m=vM, r2=vR2, ng=S0 + 4))
        e("""  s_lshl_b32 s{t0}, s{w}, 7
  s_add_u32 s{t0}, s{t0}, {rs}
  v_and_b32 v{x}, 31, v{l}
  v_lshl_add_u32 v{x}, v{x}, 2, s{t0}""".format(t0=sT0, w=sW, rs=L_RS, x=S0 + 6, l=vLane))
        C.lds("  ds_write_b32 v%d, v%d" % (S0 + 6, vR))
        self.stamp("xstats")
        e("  v_mov_b32 v%d, v%d" % (vM1, S0 + 4))
        def wr_x(q): C.lds("  ds_write_b128 v%d, v[%d:%d] offset:%d" % (vTmpA, vBig + 4 * q, vBig + 4 * q + 3, 32 * q))
        self.center(vM1, vP0, wr_x)
        C.wait_lg(C.lg_seq)
        self.stamp("xcenter")

        def ks_list(n_steps=4, per=8): return [(t, k) for t in range(n_steps) for k in range(per)]
        RG = lambda base, j: "v[%d:%d]" % (base + 4 * (j % 4), base + 4 * (j % 4) + 3)
        AR = lambda g: "a[%d:%d]" % (4 * g, 4 * g + 3)
        ks = []
        for (t, k) in ks_list():
            g = 8 * t + k
            def reads(j, t=t, k=k, g=g):
                C.lds("  ds_read_b128 a[%d:%d], v%d offset:%d" % (4 * g, 4 * g + 3, vXA, 32 * g))
                return self.read_w(W1[t], k, "nat", ring0 + 4 * (j % 4))
            def mf(j, g=g): self.mfma(accA, RG(ring0, j), AR(g), g == 0)
            ks.append(dict(step=t, chunks=[W1[t]] if k == 0 else None, reads=reads, mfma=mf, done=[W1[t]] if k == 7 else []))
        self.gemm("S1", ks)
        self.stamp("S1m")
        self.cur = "S1e"
        self.barrier(budget=0)
        self.free_slots += [5, 6, 7, 8]; self.assign(); self.pump(o.get("b_s1e", 3))
        C.nop(12)
        self.scale(accA, vR2)
        self.gelu_pack(accA, vP0, ring0)
        self.store_frags(vP0, H_BASE, 32768, (4, 0))
        self.signal_later(F_H, delay=o.get("h_delay", 1))
        self.stamp("S1e")
        if self.stop == "S1":
            self.barrier(flush_sig=True); return self.end_here()

        ks = []
        for (t, k) in ks_list():
            g = 8 * t + k
            def reads(j, t=t, k=k):
                self.read_w(WK[t], k, "nat", ring0 + 4 * (j % 4))
                return self.read_w(WV[t], k, "nat", ring1 + 4 * (j % 4))
            def mf(j, g=g):
                self.mfma(accA, AR(g), RG(ring0, j), g == 0)
                self.mfma(accB, AR(g), RG(ring1, j), g == 0)
            ks.append(dict(step=t, chunks=[WK[t], WV[t]] if k == 0 else None, reads=reads, mfma=mf, done=[WK[t], WV[t]] if k == 7 else []))
        self.gemm("S2", ks, budget=2, hooks={2: [lambda: self.poll("init")], 3: [lambda: self.poll(F_H)]})
        self.stamp("S2m")
        e("""  s_lshl_b32 s{t0}, s{w}, 7
  s_add_u32 s{t0}, s{t0}, {rs}
  v_lshrrev_b32 v{x}, 5, v{l}
  v_lshl_add_u32 v{x}, v{x}, 4, s{t0}""".format(t0=sT0, w=sW, rs=L_RS, x=vTmpA, l=vLane))
        for g in range(4):
            s_ = C.lds("  ds_read_b128 v[%d:%d], v%d offset:%d" % (ring0 + 4 * g, ring0 + 4 * g + 3, vTmpA, 32 * g))
        C.wait_lg(s_)
        C.nop(6)
        for acc in (accA, accB):
            for p in range(8):
                a = acc + 2 * p
                e("  v_pk_mul_f32 v[%d:%d], v[%d:%d], v[%d:%d]" % (a, a + 1, a, a + 1, ring0 + 2 * p, ring0 + 2 * p + 1))
        vPk, vVp = vP0, vP1
        for p in range(8): e("  v_cvt_pk_bf16_f32 v%d, v%d, v%d" % (vVp + p, accB + 2 * p, accB + 2 * p + 1))
        self.phi_pack(accA, vPk, ring1)
        C.nop(2)
        KVD = ring0
        self.mfma(KVD, "v[%d:%d]" % (vPk, vPk + 3), "v[%d:%d]" % (vVp, vVp + 3), True)
        self.mfma(KVD, "v[%d:%d]" % (vPk + 4, vPk + 7), "v[%d:%d]" % (vVp + 4, vVp + 7), False)
        Z = accB
        e("""  v_mov_b32 v{z}, 0
  s_lshl_b32 s{t0}, s{j}, 13
  s_lshl_b32 s{t1}, s{n}, 12
  s_add_u32 s{t0}, s{t0}, s{t1}
  s_add_u32 s{t0}, s{t0}, {kv}
  v_lshlrev_b32 v{a}, 2, v{l}
  v_and_b32 v{b}, 31, v{l}
  v_lshlrev_b32 v{b}, 2, v{b}""".format(z=Z, t0=sT0, t1=sT1, j=sJ, n=sN, kv=KV_BASE, a=Z + 1, b=Z + 2, l=vLane))
        C.nop(8)
        for r in range(8):
            e("  v_cndmask_b32 v%d, v%d, v%d, s[%d:%d]" % (accA + r, KVD + r, KVD + 8 + r, sMaskHi, sMaskHi + 1))
        for p in range(8): e("  v_dot2c_f32_bf16 v%d, s%d, v%d" % (Z, sOnes, vPk + p))
        for r in range(8):
            C.vmem("  buffer_atomic_add_f32 v%d, v%d, s[%d:%d], s%d offen offset:%d sc1" % (accA + r, Z + 1, S_WS, S_WS + 3, sT0, 256 * r))
        C.vmem("  buffer_atomic_add_f32 v%d, v%d, s[%d:%d], s%d offen offset:2048 sc1" % (Z, Z + 2, S_WS, S_WS + 3, sT0))
        self.signal_later(F_KV, delay=o.get("kv_delay", 2))
        self.stamp("S2e")
        if self.stop == "S2":
            self.barrier(flush_sig=True); return self.end_here()

        def t2_steps(WC, AC, acc, nks=None, first0=True):
            ks = []; g = 0
            for t in range(len(WC)):
                per = 8 if nks is None else nks[t]
                for k in range(per):
                    def reads(j, t=t, k=k):
                        self.read_a(AC[t], k, RG(ring1, j))
                        return self.read_w(WC[t], k, "cd", ring0 + 4 * (j % 4))
                    def mf(j, g=g): self.mfma(acc, RG(ring0, j), RG(ring1, j), first0 and g == 0)
                    ks.append(dict(step=t, chunks=[WC[t], AC[t]] if k == 0 else None, reads=reads, mfma=mf, done=[WC[t], AC[t]] if k == per - 1 else []))
                    g += 1
            return ks
        self.gemm("S3", t2_steps(W2, HC, accA), budget=2)
        self.stamp("S3m")
        U = ring0
        for dd in range(8):
            e("  v_lshlrev_b32 v%d, 16, v%d\n  v_and_b32 v%d, s%d, v%d" % (U + 2 * dd, vXres + dd, U + 2 * dd + 1, sHiMask, vXres + dd))
        for p in range(8):
            a = accA + 2 * p
            e("  v_pk_fma_f32 v[%d:%d], v[%d:%d], v[%d:%d], v[%d:%d] op_sel_hi:[1,0,1]" % (a, a + 1, U + 2 * p, U + 2 * p + 1, vR, vR + 1, a, a + 1))
        for p in range(8):
            a = accA + 2 * p
            e("  v_pk_add_f32 v[%d:%d], v[%d:%d], v[%d:%d] op_sel_hi:[1,0] neg_lo:[0,1] neg_hi:[0,1]" % (a, a + 1, a, a + 1, vMR, vMR + 1))
        for p in range(8): e("  v_cvt_pk_bf16_f32 v%d, v%d, v%d" % (vX1res + p, accA + 2 * p, accA + 2 * p + 1))
        self.store_frags(vX1res, X1_BASE, 32768, (4, 0))
        T = vP0
        e("  v_mov_b32 v%d, 0\n  v_mov_b32 v%d, 0" % (T, T + 1))
        for p in range(8):
            e("  v_dot2c_f32_bf16 v%d, s%d, v%d\n  v_dot2c_f32_bf16 v%d, v%d, v%d" % (T, sOnes, vX1res + p, T + 1, vX1res + p, vX1res + p))
        e("""  s_lshl_b32 s{t0}, s{tb}, 12
  s_lshl_b32 s{t1}, s{j}, 9
  s_add_u32 s{t0}, s{t0}, s{t1}
  s_lshl_b32 s{t1}, s{n}, 8
  s_add_u32 s{t0}, s{t0}, s{t1}
  s_add_u32 s{t0}, s{t0}, {st}""".format(t0=sT0, t1=sT1, tb=sTB, j=sJ, n=sN, st=ST1_BASE))
        self.hf_combine([T, T + 1], [T + 2, T + 3])
        C.vmem("  buffer_store_dwordx2 v[%d:%d], v%d, s[%d:%d], s%d offen sc1" % (T, T + 1, vStOff, S_WS, S_WS + 3, sT0))
        self.signal_later(F_X1, delay=o.get("x1_delay", 1))
        self.stamp("S3e")
        if self.stop == "S3":
            self.barrier(flush_sig=True); return self.end_here()

        def t1_steps(WC, acc, order):
            ks = []
            for (t, k) in ks_list():
                g = 8 * t + k
                def reads(j, t=t, k=k): return self.read_w(WC[t], k, order, ring0 + 4 * (j % 4))
                def mf(j, g=g): self.mfma(acc, RG(ring0, j), AR(g), g == 0)
                ks.append(dict(step=t, chunks=[WC[t]] if k == 0 else None, reads=reads, mfma=mf, done=[WC[t]] if k == 7 else []))
            return ks
        aux = {}
        def load_aux_x1():
            d("  s_lshl_b32 s%d, s%d, 13\n  s_lshl_b32 s%d, s%d, 12\n  s_add_u32 s%d, s%d, s%d\n  s_add_u32 s%d, s%d, %d\n  s_add_u32 m0, s%d, %d"
              % (sT0, sC, sT1, sI, sT0, sT0, sT1, sOff, sT0, ST1_BASE, sT1, L_ST1))
            d("  s_nop 0")
            for t in range(4):
                aux["st1"] = D.vmem("  buffer_load_dwordx4 v%d, s[%d:%d], s%d offen offset:%d sc1 lds" % (vL16, S_WS, S_WS + 3, sOff, 1024 * t))
        def load_aux_kv():
            d("  s_lshl_b32 s%d, s%d, 13\n  s_lshl_b32 s%d, s%d, 12\n  s_add_u32 s%d, s%d, s%d\n  s_add_u32 s%d, s%d, %d\n  s_mul_i32 s%d, s%d, 3072\n  s_add_u32 m0, s%d, %d"
              % (sT0, sJ, sT1, sI, sT0, sT0, sT1, sOff, sT0, KV_BASE, sT1, sI, sT1, L_KV))
            d("  s_nop 0")
            for t in range(3):
                aux["kv"] = D.vmem("  buffer_load_dwordx4 v%d, s[%d:%d], s%d offen offset:%d sc1 lds" % (vL16, S_WS, S_WS + 3, sOff, 1024 * t))
        self.gemm("S4", t1_steps(WQ, accA, "nat"), budget=1)
        self.stamp("S4m")
        self.poll(F_X1); self.pump(4); load_aux_x1()
        self.poll(F_KV); load_aux_kv()
        self.pump(o.get("b_s4e", 2))
        C.nop(12)
        self.scale(accA, vR)
        self.phi_pack(accA, vP1, ring1)
        self.stamp("S4e1")
        self.cur = "S4kv"
        self.barrier(need=X1C, dwait=aux["kv"], budget=o.get("b_s4kv", 3))
        self.stamp("S4bar")
        e("""  v_and_b32 v{a}, 31, v{l}
  v_lshlrev_b32 v{a}, 3, v{a}
  v_lshrrev_b32 v{b}, 5, v{l}
  v_lshl_add_u32 v{a}, v{b}, 11, v{a}
  s_lshl_b32 s{t0}, s{i}, 12
  s_add_u32 s{t0}, s{t0}, {st}
  v_add_u32 v{a}, s{t0}, v{a}""".format(a=vTmpA, b=vP0, l=vLane, t0=sT0, i=sI, st=L_ST1))
        for q in range(8):
            s_ = C.lds("  ds_read_b64 v[%d:%d], v%d offset:%d" % (ring0 + 2 * q, ring0 + 2 * q + 1, vTmpA, 256 * q))
        e("""  s_mul_i32 s{t0}, s{n}, 3072
  s_add_u32 s{t0}, s{t0}, {kv}
  v_lshl_add_u32 v{a}, v{l}, 2, s{t0}
  v_bfe_u32 v{b}, v{l}, 4, 1
  v_lshlrev_b32 v{b}, 6, v{b}
  v_lshrrev_b32 v{c}, 5, v{l}
  v_lshl_add_u32 v{b}, v{c}, 4, v{b}
  v_add_u32 v{b}, s{t0}, v{b}""".format(t0=sT0, n=sN, kv=L_KV, a=vP0, b=vP0 + 1, c=vP0 + 2, l=vLane))
        vKv, vZ = accA, accA + 8
        for r in range(8):
            C.lds("  ds_read_b32 v%d, v%d offset:%d" % (vKv + r, vP0, 256 * r))
        C.lds("  ds_read_b128 v[%d:%d], v%d offset:2048" % (vZ, vZ + 3, vP0 + 1))
        kv_seq = C.lds("  ds_read_b128 v[%d:%d], v%d offset:2080" % (vZ + 4, vZ + 7, vP0 + 1))
        C.wait_lg(s_)
        for q in range(1, 8):
            e("  v_pk_add_f32 v[%d:%d], v[%d:%d], v[%d:%d]" % (ring0, ring0 + 1, ring0, ring0 + 1, ring0 + 2 * q, ring0 + 2 * q + 1))
        self.hf_combine([ring0, ring0 + 1], [ring0 + 2, ring0 + 3])
        self.finish_stats(ring0, vM1, vR1)
        e("  v_sub_f32 v%d, 0, v%d" % (vM1, vM1))
        C.wait_lg(kv_seq)
        P = vP0
        for dd in range(4):
            e("  v_cvt_pk_bf16_f32 v%d, v%d, v%d" % (P + dd, vKv + 2 * dd, vKv + 2 * dd + 1))
            e("  v_cvt_pk_bf16_f32 v%d, v%d, v%d" % (P + 4 + dd, vZ + 2 * dd, vZ + 2 * dd + 1))
        e("  v_mov_b32 v%d, 0" % vTmpA)
        MA = ring1
        for dd in range(8):
            e("  v_cndmask_b32 v%d, v%d, v%d, s[%d:%d]" % (MA + dd, P + dd, vTmpA, sMaskHi, sMaskHi + 1))
            e("  v_cndmask_b32 v%d, v%d, v%d, s[%d:%d]" % (MA + 8 + dd, vTmpA, P + dd, sMaskHi, sMaskHi + 1))
        C.nop(2)
        R_ = lambda a: "v[%d:%d]" % (a, a + 3)
        self.mfma(accA, R_(MA), R_(vP1), True)
        self.mfma(accB, R_(MA + 4), R_(vP1), True)
        self.mfma(accA, R_(MA + 8), R_(vP1 + 4), False)
        self.mfma(accB, R_(MA + 12), R_(vP1 + 4), False)
        sl = [X1C[q].slot * SLOT for q in range(4)]
        e("""  s_mul_i32 s{t0}, s{n}, {d02}
  s_add_u32 s{t0}, s{t0}, {a0}
  s_mul_i32 s{t1}, s{n}, {d13}
  s_add_u32 s{t1}, s{t1}, {a1}
  s_lshl_b32 s{t2}, s{i}, 13
  s_add_u32 s{t0}, s{t0}, s{t2}
  s_add_u32 s{t1}, s{t1}, s{t2}
  v_add_u32 v{x}, s{t0}, v{l16}
  v_add_u32 v{y}, s{t1}, v{l16}""".format(n=sN, t0=sT0, t1=sT1, t2=sT2, i=sI, a0=sl[0], a1=sl[1], d02=(sl[2] - sl[0]), d13=(sl[3] - sl[1]), x=vTmpA, y=vXA, l16=vL16))
        C.nop(8)
        e("  v_add_f32 v{a}, 0x358637bd, v{d0}\n  v_add_f32 v{b}, 0x358637bd, v{d1}\n  v_rcp_f32 v{a}, v{a}\n  v_rcp_f32 v{b}, v{b}".format(a=vP0, b=vP0 + 2, d0=accB, d1=accB + 8))
        C.nop(1)
        for p in range(8):
            a = accA + 2 * p; r = vP0 if p < 4 else vP0 + 2
            e("  v_pk_mul_f32 v[%d:%d], v[%d:%d], v[%d:%d] op_sel_hi:[1,0]" % (a, a + 1, a, a + 1, r, r + 1))
        for p in range(8): e("  v_cvt_pk_bf16_f32 v%d, v%d, v%d" % (vP1 + p, accA + 2 * p, accA + 2 * p + 1))
        self.store_frags(vP1, O_BASE, 32768, (4, 0))
        self.signal_later(F_O, delay=1)
        self.stamp("S4e2")
        if self.stop == "S4":
            self.barrier(flush_sig=True); return self.end_here()

        tseq = []
        for q in range(16):
            tseq.append(C.lds("  ds_read_b128 v[%d:%d], v%d offset:%d" % (vBig + 4 * q, vBig + 4 * q + 3, vTmpA if q < 8 else vXA, 1024 * (q & 7))))
        def wr_x1(q): C.lds("  ds_write_b128 v%d, v[%d:%d] offset:%d" % (vTmpA if q < 8 else vXA, vBig + 4 * q, vBig + 4 * q + 3, 1024 * (q & 7)))
        C.wait_lg(tseq[15])
        self.center(vM1, vP0, wr_x1)
        C.wait_lg(C.lg_seq)
        self.cur = "x1c"
        self.barrier(budget=1)
        self.stamp("x1center")

        for p in range(3):
            if p == 0:
                ks = []
                for (t, k) in ks_list():
                    g = 8 * t + k
                    def reads(j, t=t, k=k, g=g):
                        self.read_a(X1C[t], k, AR(g))
                        return self.read_w(W3[0][t], k, "cd", ring0 + 4 * (j % 4))
                    def mf(j, g=g): self.mfma(accA, RG(ring0, j), AR(g), g == 0)
                    ks.append(dict(step=t, chunks=[W3[0][t]] if k == 0 else None, reads=reads, mfma=mf, done=[W3[0][t], X1C[t]] if k == 7 else []))
                self.gemm("S5_0", ks, budget=2)
            else:
                hooks = {}
                if p == 1: hooks = {3: [lambda: self.poll(F_O)]}
                self.gemm("S5_%d" % p, t1_steps(W3[p], accA, "cd"), hooks=hooks, budget=o.get("b_s5", 1))
            self.stamp("S5m%d" % p)
            self.pump(o.get("b_s5e", 2))
            C.nop(12)
            self.scale(accA, vR1)
            self.gelu_pack(accA, vP0, ring1)
            self.store_frags(vP0, G_BASE, 98304, (12, 4 * p))
            self.signal_later(F_G0 + p, delay=1 if p < 2 else o.get("g2_delay", 1))
            self.stamp("S5e%d" % p)
        if self.stop == "S5":
            self.barrier(flush_sig=True); return self.end_here()

        self.gemm("S6", t2_steps(WO, OC, accF), budget=2, hooks={1: [lambda: self.poll(F_G0)]})
        self.stamp("S6m")
        nks = {0: [8, 8, 8, 6], 1: [8, 8, 8, 4], 2: [8, 8, 8, 4]}
        for p in range(3):
            hooks = {}
            if p < 2: hooks = {o.get("g_hook", 1): [lambda p=p: self.poll(F_G1 + p)]}
            self.gemm("S7_%d" % p, t2_steps(W4[p], GC[p], accF, nks=nks[p], first0=False), budget=2, hooks=hooks)
            self.stamp("S7m%d" % p)
        U = ring0; X = ring1
        for dd in range(8):
            e("  v_lshlrev_b32 v%d, 16, v%d\n  v_and_b32 v%d, s%d, v%d" % (U + 2 * dd, vXres + dd, U + 2 * dd + 1, sHiMask, vXres + dd))
            e("  v_lshlrev_b32 v%d, 16, v%d\n  v_and_b32 v%d, s%d, v%d" % (X + 2 * dd, vX1res + dd, X + 2 * dd + 1, sHiMask, vX1res + dd))
        for p in range(8):
            e("  v_pk_add_f32 v[%d:%d], v[%d:%d], v[%d:%d]" % (U + 2 * p, U + 2 * p + 1, U + 2 * p, U + 2 * p + 1, X + 2 * p, X + 2 * p + 1))
        for p in range(8):
            a = accF + 2 * p
            e("  v_pk_add_f32 v[%d:%d], v[%d:%d], v[%d:%d]" % (a, a + 1, a, a + 1, U + 2 * p, U + 2 * p + 1))
        Dd = vP0
        for p in range(8): e("  v_cvt_pk_bf16_f32 v%d, v%d, v%d" % (Dd + p, accF + 2 * p, accF + 2 * p + 1))
        C.nop(2)
        for gp in range(2):
            e("  v_permlane32_swap_b32 v%d, v%d\n  v_permlane32_swap_b32 v%d, v%d" % (Dd + 4 * gp, Dd + 4 * gp + 2, Dd + 4 * gp + 1, Dd + 4 * gp + 3))
        C.nop(1)
        for gp in range(2):
            C.vmem("  buffer_store_dwordx4 v[%d:%d], v%d, s[%d:%d], 0 offen offset:%d" % (Dd + 4 * gp, Dd + 4 * gp + 3, vOutOff, S_OUT, S_OUT + 3, 32 * gp))
        self.stamp("end")
        self.finish()

    def text(self):
        self.build()
        hdr = open("cdna_kernels/%s.s.ref" % KNAME.replace("_kernel", "")).read().split("\n")
        head = []
        for l in hdr:
            if l.startswith("; @launch"): head.append("; @launch grid=(256,1,1) block=(384,1,1) lds=%d" % LDS_BYTES)
            elif l.startswith(";"): head.append(l)
            else: break
        t = "\n".join(head) + "\n"
        t += '.amdgcn_target "amdgcn-amd-amdhsa--gfx950"\n.text\n.globl %s\n.p2align 8\n.type %s,@function\n%s:\n' % (KNAME, KNAME, KNAME)
        t += "\n".join(self.head.L) + "\n" + "\n".join(self.C.L) + "\n.p2align 6\nLloader:\n" + "\n".join(self.D.L) + "\n" + "\n".join(self.tail)
        t += "\nLexit:\n  s_endpgm\nLcode_end:\n"
        t = t.replace("CODE_PF_MAX", "(Lcode_end - %s - 4)" % KNAME)
        t += """.section .rodata,"a"
.p2align 6
.amdhsa_kernel %s
  .amdhsa_next_free_vgpr 256
  .amdhsa_next_free_sgpr 102
  .amdhsa_accum_offset 128
  .amdhsa_group_segment_fixed_size 0
  .amdhsa_kernarg_size 88
  .amdhsa_user_sgpr_count 2
  .amdhsa_user_sgpr_kernarg_segment_ptr 1
  .amdhsa_system_sgpr_workgroup_id_x 1
  .amdhsa_float_denorm_mode_32 3
.end_amdhsa_kernel
""" % KNAME
        return t


if __name__ == "__main__":
    import argparse
    ap = argparse.ArgumentParser()
    ap.add_argument("-o", default="k.s")
    ap.add_argument("--stop", default=None)
    ap.add_argument("--stamps", action="store_true")
    ap.add_argument("--trace", action="store_true")
    ap.add_argument("--opt", action="append", default=[])
    a = ap.parse_args()
    opts = {}
    for kv in a.opt:
        k, v = kv.split("="); opts[k] = int(v)
    g = Gen(stop=a.stop, stamps=a.stamps, opts=opts)
    t = g.text()
    open(a.o, "w").write(t)
    open(a.o + ".stamps", "w").write("\n".join(g.stamp_names) + "\n--\n" + "\n".join(g.lstamp_names[:60]))
    if a.trace: print("\n".join(g.trace))
    print("lines", len(t.split("\n")), "stamps", len(g.stamp_names), "barriers", g.nbar)
```

```python
import sys, math, struct

KNAME = "parallel_sum__linear_attn_block__mixer_s_mlp__prompt_kernel"

H_BASE   = 0x000000
X1_BASE  = 0x200000
O_BASE   = 0x400000
G_BASE   = 0x600000
KV_BASE  = 0xC00000
FL_BASE  = 0xC20000
ST1_BASE = 0xC40000
STAMP_BASE = 0xD00000
WS_SIZE  = 0x1000000
F_H, F_X1, F_O, F_G0, F_G1, F_G2, F_KV = range(7)

SLOT = 16384
XBASE = 5 * SLOT
XSTRIDE = 1040
SCR = XBASE + 64 * XSTRIDE
L_RS = SCR
L_ST1 = L_RS + 512
L_STAT = L_ST1
L_KV = L_ST1 + 8192
LDS_BYTES = 163840
assert L_KV + 6144 <= LDS_BYTES

S_X, S_QKV, S_WO, S_W1, S_W2, S_W3, S_W4, S_OUT, S_WS, S_DBG = [4 + 4 * k for k in range(10)]
sC, sJ, sW, sI, sN = 44, 45, 46, 47, 48
sM0w, sB1024, sBqkv, sB3, sB4 = 49, 50, 51, 52, 53
sAct, sActG = 54, 55
sOff, sT0, sT1, sTB = 57, 58, 59, 60
sOnes = 61
sMaskHi = 62
sC1 = 64
sOne = 66
sLog2e = 68
sEps6 = 70
sTime = 72
sTmo = 74
sHiMask = 75
sT2, sT3 = 76, 77
sRT0 = 78
sSelLo, sSelHi = 56, 3
sKvB = 80

vLane, vL16 = 1, 2
vWn, vWc, vA = 3, 6, 9
vXA, vTmpA, vFlagV, vOutOff, vStOff, vStamp = 12, 13, 14, 15, 16, 17
vM, vR, vR2, vMR, vM1, vR1 = 18, 20, 22, 24, 26, 28
vC0 = 30
vXres, vX1res = 32, 40
accA, accB = 48, 64
accF = accB
ring0, ring1 = 80, 96
vP0, vP1 = 112, 120
vBig = 48
lD1024, lD3072, lD2752, lHs, lTmp, lPH, lPC, lPK, lPI, lExp, lT, lPoll = 3, 4, 5, 6, 7, 9, 10, 11, 12, 13, 20, 32


class Chunk:
    def __init__(self, name, kind, flag=None, **kw):
        self.name = name; self.kind = kind; self.flag = flag; self.kw = kw
        self.slot = None; self.last_vm = None
        self.last_read = None; self.reads_done = False; self.emitted = False; self.arrived = False


class Stream:
    def __init__(self, name):
        self.name = name; self.L = []
        self.vm_seq = 0; self.vm_done = 0; self.lg_seq = 0; self.lg_done = 0
    def e(self, s):
        for l in s.strip("\n").split("\n"): self.L.append(l)
    def vmem(self, s):
        if self.vm_seq - self.vm_done >= 60:
            self.wait_vm(self.vm_seq - 52)
        self.e(s); self.vm_seq += 1
        return self.vm_seq
    def lds(self, s):
        self.e(s); self.lg_seq += 1
        return self.lg_seq
    def wait_vm(self, seq):
        if seq is None or seq <= self.vm_done: return
        self.e("  s_waitcnt vmcnt(%d)" % (self.vm_seq - seq)); self.vm_done = seq
    def wait_lg(self, seq):
        if seq is None or seq <= self.lg_done: return
        n = min(self.lg_seq - seq, 15)
        self.e("  s_waitcnt lgkmcnt(%d)" % n); self.lg_done = self.lg_seq - n
    def nop(self, n):
        while n > 0:
            k = min(n, 16); self.e("  s_nop %d" % (k - 1)); n -= k


def fbits(x): return "0x%08x" % struct.unpack("<I", struct.pack("<f", x))[0]


class Gen:
    def __init__(self, stop=None, stamps=False, opts=None):
        self.C = Stream("C"); self.D = Stream("D"); self.tail = []
        self.stop = stop; self.stamps = stamps; self.stamp_names = []; self.lstamp_names = []
        self.opts = opts or {}
        self.lab = 0
        self.free_slots = []; self.order = []; self.order_pos = 0
        self.fifo = []; self.blocked = []; self.flags_ok = set(); self.live = []
        self.poll_seq = {}; self.pending_sig = []; self.trace = []; self.cur = "prologue"; self.nbar = 0

    def label(self, b):
        self.lab += 1; return "%s_%d" % (b, self.lab)
    def stamp(self, name):
        if not self.stamps: return
        k = len(self.stamp_names); self.stamp_names.append(name); assert k < 60
        self.C.e("  s_memtime s[%d:%d]\n  s_waitcnt lgkmcnt(0)\n  v_writelane_b32 v%d, s%d, %d" % (sTime, sTime + 1, vStamp, sTime, k))
        self.C.lg_done = self.C.lg_seq
    def lstamp(self, name):
        if not self.stamps: return
        k = len(self.lstamp_names); self.lstamp_names.append(name)
        if k >= 60: return
        self.D.e("  s_memtime s[%d:%d]\n  s_waitcnt lgkmcnt(0)\n  v_writelane_b32 v%d, s%d, %d" % (sTime, sTime + 1, vStamp, sTime, k))

    def make_atoms(self, ch):
        slot = ch.slot * SLOT; k = ch.kind; kw = ch.kw; at = []
        if k == "W":
            srd, vd, base, lit, stride = kw["srd"], kw["vd"], kw["base"], kw["lit"], kw["stride"]
            for t in range(8):
                if t == 0:
                    pre = "  s_add_u32 m0, s%d, %d\n  s_add_u32 s%d, s%d, %d" % (sM0w, slot, sOff, base, lit)
                else:
                    pre = "  s_addk_i32 m0, 1024\n  s_addk_i32 s%d, %d" % (sOff, 8 * stride)
                at.append(pre + "\n  buffer_load_dwordx4 v%d, s[%d:%d], s%d offen lds" % (vd, srd, srd + 3, sOff))
        elif k == "A":
            base, lits, vo = kw["base"], kw["lits"], kw.get("vo", vL16)
            for g in range(2):
                for t in range(4):
                    pre = ""
                    if t == 0:
                        if g == 0: pre = kw.get("pre", "")
                        pre += "  s_add_u32 m0, s%d, %d\n  s_add_u32 s%d, s%d, %d\n" % (sM0w, slot + 4096 * g, sOff, base, lits[g])
                    at.append(pre + "  buffer_load_dwordx4 v%d, s[%d:%d], s%d offen offset:%d sc1 lds" % (vo, S_WS, S_WS + 3, sOff, 1024 * t))
        else:
            raise ValueError(k)
        return at
    def assign(self):
        while self.free_slots and self.order_pos < len(self.order):
            ch = self.order[self.order_pos]; self.order_pos += 1
            ch.slot = self.free_slots.pop(0); self.live.append(ch)
            self.trace.append("%s: assign %s -> slot %d" % (self.cur, ch.name, ch.slot))
            if ch.flag is not None and ch.flag not in self.flags_ok: self.blocked.append(ch)
            else: self.fifo.append(ch)
    def unblock(self, flag):
        self.flags_ok.add(flag)
        first = [ch for ch in self.blocked if ch.flag == flag]
        self.blocked = [ch for ch in self.blocked if ch.flag != flag]
        self.fifo = first + self.fifo
    def pump(self, nchunks):
        while nchunks > 0 and self.fifo:
            ch = self.fifo.pop(0)
            for a in self.make_atoms(ch): ch.last_vm = self.D.vmem(a)
            ch.emitted = True
            self.trace.append("%s: issued %s" % (self.cur, ch.name))
            nchunks -= 1
    def pump_until(self, chunks):
        for ch in chunks:
            assert ch.slot is not None, "chunk %s has no slot at %s" % (ch.name, self.cur)
            assert ch not in self.blocked, "chunk %s still blocked at %s" % (ch.name, self.cur)
            while not ch.emitted: self.pump(1)

    def barrier(self, flush_sig=False, budget=1, need=(), dwait=None):
        C, D = self.C, self.D
        todo = [c for c in need if not c.arrived]
        self.pump_until(todo)
        if todo: D.wait_vm(max(c.last_vm for c in todo))
        if dwait is not None: D.wait_vm(dwait)
        fire = []
        for sg in list(self.pending_sig):
            sg["age"] += 1
            if flush_sig or sg["age"] > sg["delay"]:
                C.wait_vm(sg["seq"]); fire.append(sg); self.pending_sig.remove(sg)
        self.nbar += 1
        C.e("  s_barrier"); D.e("  s_barrier")
        self.lstamp("%s" % self.cur)
        for c in todo: c.arrived = True
        for sg in fire: self.fire_signal(sg)
        for ch in list(self.live):
            if ch.reads_done and ch.last_read is not None and ch.last_read <= C.lg_done:
                self.live.remove(ch); self.free_slots.append(ch.slot)
                self.trace.append("%s: free %s (slot %d)" % (self.cur, ch.name, ch.slot))
        self.assign()
        self.pump(budget)

    def signal_later(self, ftype, delay=0):
        self.pending_sig.append(dict(ftype=ftype, seq=self.C.vm_seq, delay=delay, age=0))
    def fire_signal(self, sg):
        C = self.C; ft = sg["ftype"]
        self.trace.append("%s: signal %d" % (self.cur, ft))
        a, b = (sJ, sC) if ft == F_KV else (sC, sJ)
        C.e("  s_lshl_b32 s%d, s%d, 7\n  s_lshl_b32 s%d, s%d, 2" % (sT2, a, sT3, b))
        C.e("  s_add_u32 s%d, s%d, s%d\n  s_add_u32 s%d, s%d, %d" % (sT2, sT2, sT3, sT2, sT2, FL_BASE + ft * 4096))
        C.e("  v_mov_b32 v%d, 1" % vTmpA)
        C.vmem("  buffer_store_dword v%d, v%d, s[%d:%d], s%d offen sc1" % (vTmpA, vFlagV, S_WS, S_WS + 3, sT2))
    def poll_text(self, what):
        r = lPoll + (0 if what == "init" else 1 + what)
        if what == "init":
            return "", "  buffer_load_dword v%d, v%d, s[%d:%d], 0 offen sc1" % (r, lPI, S_DBG, S_DBG + 3), "  v_cmp_eq_u32 vcc, v%d, v%d" % (lExp, r)
        va = {F_H: lPH, F_KV: lPK}.get(what, lPC)
        return ("  s_mov_b32 s%d, %d\n" % (sT2, FL_BASE + what * 4096),
                "  buffer_load_dword v%d, v%d, s[%d:%d], s%d offen sc1" % (r, va, S_WS, S_WS + 3, sT2), "  v_cmp_eq_u32 vcc, 1, v%d" % r)
    def poll_issue(self, what):
        pre, t, _ = self.poll_text(what)
        self.poll_seq[what] = self.D.vmem(pre + t)
    def poll_check(self, what):
        D = self.D
        pre, t, cmp_ = self.poll_text(what)
        D.wait_vm(self.poll_seq[what])
        slow = self.label("Lslow"); done = self.label("Ldone"); spin = self.label("Lspin")
        D.e(cmp_ + "\n  s_cmp_eq_u64 vcc, -1\n  s_cbranch_scc0 %s\n%s:" % (slow, done))
        self.tail.append("%s:\n  s_mov_b32 s%d, 4000\n%s%s:\n%s\n  s_waitcnt vmcnt(0)\n%s\n  s_cmp_eq_u64 vcc, -1\n  s_cbranch_scc1 %s\n"
                         "  s_sleep %d\n  s_sub_u32 s%d, s%d, 1\n  s_cmp_lg_u32 s%d, 0\n  s_cbranch_scc1 %s\n  s_branch %s"
                         % (slow, sTmo, pre, spin, t, cmp_, done, self.opts.get("spin_sleep", 2), sTmo, sTmo, sTmo, spin, done))
        self.trace.append("%s: poll %s" % (self.cur, what))
        self.lstamp("poll_%s" % what)
        if what != "init": self.unblock(what)
    def poll(self, what):
        self.poll_issue(what); self.poll_check(what)

    @staticmethod
    def win(base_reg, addr): return base_reg + (addr >> 16), addr & 0xffff
    def read_w(self, ch, ks, order, dst):
        a = ch.slot * SLOT + ks * 2048
        reg, off = self.win(vWn if order == "nat" else vWc, a)
        second = 512 if order == "nat" else 1024
        self.C.lds("  ds_read_b64_tr_b16 v[%d:%d], v%d offset:%d" % (dst, dst + 1, reg, off))
        s = self.C.lds("  ds_read_b64_tr_b16 v[%d:%d], v%d offset:%d" % (dst + 2, dst + 3, reg, off + second))
        ch.last_read = s
        return s
    def read_a(self, ch, ks, dst):
        a = ch.slot * SLOT + ks * 1024
        reg, off = self.win(vA, a)
        s = self.C.lds("  ds_read_b128 %s, v%d offset:%d" % (dst, reg, off))
        ch.last_read = s
        return s

    def gemm(self, name, ksteps, hooks=None, budget=1, release=None, extras=None, rel_hooks=()):
        hooks = hooks or {}
        C = self.C
        LA = 2; n = len(ksteps); seqs = [None] * n
        for idx in range(-LA, n):
            j = idx + LA
            if j < n:
                k = ksteps[j]
                if k.get("chunks"):
                    self.cur = "%s.%d" % (name, k["step"])
                    hk = hooks.get(k["step"], [])
                    b = budget[k["step"]] if isinstance(budget, (list, tuple)) else budget
                    self.barrier(need=k["chunks"], budget=0 if hk else b)
                    if hk:
                        for fn in hk: fn()
                        self.pump(b)
                seqs[j] = k["reads"](j)
                for ch in k.get("done", []): ch.reads_done = True
            if idx >= 0:
                C.wait_lg(seqs[idx])
                ksteps[idx]["mfma"](idx)
                if extras and idx in extras: extras[idx]()
        self.cur = name + ".end"
        if release is not None:
            self.barrier(budget=0 if rel_hooks else release)
            if rel_hooks:
                for fn in rel_hooks: fn()
                self.pump(release)

    def mfma(self, acc, a, b, first):
        c = "0" if first else "v[%d:%d]" % (acc, acc + 15)
        self.C.e("  v_mfma_f32_32x32x16_bf16 v[%d:%d], %s, %s, %s" % (acc, acc + 15, a, b, c))

    def hf_combine(self, regs, tmps):
        C = self.C
        for r, t in zip(regs, tmps): C.e("  v_mov_b32 v%d, v%d" % (t, r))
        C.nop(2)
        for r, t in zip(regs, tmps): C.e("  v_permlane32_swap_b32 v%d, v%d" % (r, t))
        C.nop(1)
        for r, t in zip(regs, tmps): C.e("  v_add_f32 v%d, v%d, v%d" % (r, r, t))
    def scale(self, acc, vr):
        for p in range(8):
            a = acc + 2 * p
            self.C.e("  v_pk_mul_f32 v[%d:%d], v[%d:%d], v[%d:%d] op_sel_hi:[1,0]" % (a, a + 1, a, a + 1, vr, vr + 1))
    def gelu_pack(self, acc, dst, T):
        e = self.C.e; P = range(8)
        for p in P: e("  v_pk_mul_f32 v[%d:%d], v[%d:%d], v[%d:%d]" % (T + 2 * p, T + 2 * p + 1, acc + 2 * p, acc + 2 * p + 1, acc + 2 * p, acc + 2 * p + 1))
        for p in P: e("  v_pk_fma_f32 v[%d:%d], v[%d:%d], s[%d:%d], v[%d:%d]" % (T + 2 * p, T + 2 * p + 1, T + 2 * p, T + 2 * p + 1, sC1, sC1 + 1, vC0, vC0 + 1))
        for p in P: e("  v_pk_mul_f32 v[%d:%d], v[%d:%d], v[%d:%d]" % (T + 2 * p, T + 2 * p + 1, T + 2 * p, T + 2 * p + 1, acc + 2 * p, acc + 2 * p + 1))
        for q in range(16): e("  v_exp_f32 v%d, v%d" % (T + q, T + q))
        for p in P: e("  v_pk_add_f32 v[%d:%d], v[%d:%d], s[%d:%d]" % (T + 2 * p, T + 2 * p + 1, T + 2 * p, T + 2 * p + 1, sOne, sOne + 1))
        for q in range(16): e("  v_rcp_f32 v%d, v%d" % (T + q, T + q))
        for p in P: e("  v_pk_mul_f32 v[%d:%d], v[%d:%d], v[%d:%d]" % (acc + 2 * p, acc + 2 * p + 1, acc + 2 * p, acc + 2 * p + 1, T + 2 * p, T + 2 * p + 1))
        for p in P: e("  v_cvt_pk_bf16_f32 v%d, v%d, v%d" % (dst + p, acc + 2 * p, acc + 2 * p + 1))
    def phi_pack(self, acc, dst, T):
        e = self.C.e; P = range(8)
        for p in P: e("  v_pk_mul_f32 v[%d:%d], v[%d:%d], s[%d:%d]" % (T + 2 * p, T + 2 * p + 1, acc + 2 * p, acc + 2 * p + 1, sLog2e, sLog2e + 1))
        for q in range(16): e("  v_min_f32 v%d, 0, v%d" % (T + q, T + q))
        for q in range(16): e("  v_exp_f32 v%d, v%d" % (T + q, T + q))
        for q in range(16): e("  v_max_f32 v%d, 0, v%d" % (acc + q, acc + q))
        for p in P: e("  v_pk_add_f32 v[%d:%d], v[%d:%d], v[%d:%d]" % (acc + 2 * p, acc + 2 * p + 1, acc + 2 * p, acc + 2 * p + 1, T + 2 * p, T + 2 * p + 1))
        for p in P: e("  v_pk_add_f32 v[%d:%d], v[%d:%d], s[%d:%d]" % (acc + 2 * p, acc + 2 * p + 1, acc + 2 * p, acc + 2 * p + 1, sEps6, sEps6 + 1))
        for p in P: e("  v_cvt_pk_bf16_f32 v%d, v%d, v%d" % (dst + p, acc + 2 * p, acc + 2 * p + 1))
    def store_frags(self, src, base, tbstride, ks_expr):
        C = self.C; mul_j, add = ks_expr
        C.e("  s_mul_i32 s%d, s%d, %d" % (sT0, sTB, tbstride))
        C.e("  s_mul_i32 s%d, s%d, %d" % (sT1, sJ, mul_j * 1024))
        C.e("  s_add_u32 s%d, s%d, s%d" % (sT0, sT0, sT1))
        C.e("  s_lshl_b32 s%d, s%d, 11" % (sT1, sN))
        C.e("  s_add_u32 s%d, s%d, s%d" % (sT0, sT0, sT1))
        C.e("  s_add_u32 s%d, s%d, %d" % (sT0, sT0, base + add * 1024))
        C.vmem("  buffer_store_dwordx4 v[%d:%d], v%d, s[%d:%d], s%d offen sc1" % (src, src + 3, vL16, S_WS, S_WS + 3, sT0))
        return C.vmem("  buffer_store_dwordx4 v[%d:%d], v%d, s[%d:%d], s%d offen offset:1024 sc1" % (src + 4, src + 7, vL16, S_WS, S_WS + 3, sT0))
    def finish_stats(self, vs, vm, vr):
        self.C.e("""  v_mul_f32 v{m}, 0x3b000000, v{s}
  v_mul_f32 v{q}, 0x3b000000, v{q}
  v_fma_f32 v{q}, -v{m}, v{m}, v{q}
  v_max_f32 v{q}, 0, v{q}
  v_add_f32 v{s}, 0x3727c5ac, v{q}
  v_rsq_f32 v{r}, v{s}""".format(m=vm, s=vs, q=vs + 1, r=vr))
        self.C.nop(1)
    def center(self, vneg, tmp, write):
        e = self.C.e
        for q in range(16):
            r = vBig + 4 * q; t = tmp + 8 * (q & 1)
            for d in range(4):
                e("  v_dot2_f32_bf16 v%d, v%d, s%d, v%d" % (t + 2 * d, r + d, sSelLo, vneg))
                e("  v_dot2_f32_bf16 v%d, v%d, s%d, v%d" % (t + 2 * d + 1, r + d, sSelHi, vneg))
            if q > 0:
                self._cvt4(q - 1, tmp); write(q - 1)
        self.C.nop(3)
        self._cvt4(15, tmp); write(15)
    def _cvt4(self, q, tmp):
        r = vBig + 4 * q; t = tmp + 8 * (q & 1)
        for d in range(4):
            self.C.e("  v_cvt_pk_bf16_f32 v%d, v%d, v%d" % (r + d, t + 2 * d, t + 2 * d + 1))

    def end_here(self):
        self.pump(100)
        self.C.e("  s_waitcnt vmcnt(0) lgkmcnt(0)")
        self.D.e("  s_waitcnt vmcnt(0) lgkmcnt(0)")
        self.finish()
    def finish(self):
        for S in (self.C, self.D):
            if self.stamps:
                S.e("  s_memrealtime s[%d:%d]\n  s_waitcnt lgkmcnt(0)" % (sTime, sTime + 1))
                S.e("  v_writelane_b32 v%d, s%d, 62\n  v_writelane_b32 v%d, s%d, 63" % (vStamp, sRT0, vStamp, sTime))
                S.e("  s_lshl_b32 s%d, s2, 11\n  s_lshl_b32 s%d, s%d, 8\n  s_add_u32 s%d, s%d, s%d\n  s_add_u32 s%d, s%d, %d"
                    % (sT0, sT1, sW, sT0, sT0, sT1, sT0, sT0, STAMP_BASE))
                S.e("  v_lshlrev_b32 v%d, 2, v%d" % (vTmpA, vLane))
                S.e("  buffer_store_dword v%d, v%d, s[%d:%d], s%d offen" % (vStamp, vTmpA, S_WS, S_WS + 3, sT0))
            S.e("  s_endpgm")

    def build(self):
        C, D = self.C, self.D
        e = C.e; d = D.e; o = self.opts
        self.head = Stream("H"); h = self.head.e
        def W(name, srd, vd, base, stride, col, k0):
            return Chunk(name, "W", srd=srd, vd=vd, base=base, stride=stride, lit=col + k0 * stride)
        W1 = [W("W1_%d" % q, S_W1, lD1024, sB1024, 1024, 0, 128 * q) for q in range(4)]
        WK = [W("K_%d" % q, S_QKV, lD3072, sBqkv, 3072, 1024, 128 * q) for q in range(4)]
        WV = [W("V_%d" % q, S_QKV, lD3072, sBqkv, 3072, 2048, 128 * q) for q in range(4)]
        WQ = [W("Q_%d" % q, S_QKV, lD3072, sBqkv, 3072, 0, 128 * q) for q in range(4)]
        W2 = [W("W2_%d" % q, S_W2, lD1024, sB1024, 1024, 0, 128 * q) for q in range(4)]
        WO = [W("WO_%d" % q, S_WO, lD1024, sB1024, 1024, 0, 128 * q) for q in range(4)]
        W3 = [[W("W3_%d_%d" % (p, q), S_W3, lD2752, sB3, 2752, 128 * p, 128 * q) for q in range(4)] for p in range(3)]
        W4 = [[W("W4_%d_%d" % (p, pp), S_W4, lD1024, sB4, 1024, 0, 384 * pp + 64 * p) for pp in range(4)] for p in range(3)]
        shifts = [1, -1, 2, -2]
        def hpre(q):
            return ("  v_and_b32 v{t}, 31, v{l}\n  s_lshl_b32 s{a}, s{tb}, 5\n  s_add_u32 s{a}, s{a}, {dd}\n  v_add_u32 v{t}, s{a}, v{t}\n"
                    "  v_cmp_gt_u32 vcc, 0x800, v{t}\n"
                    "  v_lshrrev_b32 v{h}, 5, v{t}\n  v_lshlrev_b32 v{h}, 15, v{h}\n  v_and_b32 v{t}, 31, v{t}\n  v_lshl_add_u32 v{h}, v{t}, 4, v{h}\n"
                    "  v_and_b32 v{t}, 32, v{l}\n  v_lshl_add_u32 v{h}, v{t}, 4, v{h}\n  v_mov_b32 v{t}, 0x80000000\n  v_cndmask_b32 v{h}, v{t}, v{h}, vcc\n"
                    "  s_mov_b32 s{a}, 0\n"
                    ).format(t=lTmp, l=vLane, a=sT3, tb=sTB, dd=(-shifts[q]) & 0xffffffff, h=lHs)
        HC = [Chunk("H_%d" % q, "A", flag=F_H, base=sT3, lits=[H_BASE + q * 8192, H_BASE + q * 8192 + 4096], vo=lHs, pre=hpre(q)) for q in range(4)]
        X1C = [Chunk("X1_%d" % q, "A", flag=F_X1, base=sAct, lits=[X1_BASE + q * 8192, X1_BASE + q * 8192 + 4096]) for q in range(4)]
        OC = [Chunk("O_%d" % q, "A", flag=F_O, base=sAct, lits=[O_BASE + q * 8192, O_BASE + q * 8192 + 4096]) for q in range(4)]
        GC = [[Chunk("G_%d_%d" % (p, pp), "A", flag=F_G0 + p, base=sActG,
                     lits=[G_BASE + (24 * pp + 4 * p) * 1024, G_BASE + (24 * pp + 12 + 4 * p) * 1024]) for pp in range(4)] for p in range(3)]
        order = W1 + [WK[0], WV[0]]
        for q in range(1, 4): order += [WK[q], WV[q]]
        for q in range(4): order += [W2[q], HC[q]]
        order += WQ
        order += X1C + W3[0] if o.get("x1first", 1) else W3[0] + X1C
        order += W3[1] + W3[2]
        for pp in range(4): order += [W4[0][pp], GC[0][pp]]
        for q in range(4): order += [WO[q], OC[q]]
        for p in range(1, 3):
            for pp in range(4): order += [W4[p][pp], GC[p][pp]]
        self.order = order
        self.free_slots = [0, 1, 2, 3, 4]

        h("  s_cmp_ge_u32 s2, 0x100\n  s_cbranch_scc1 Lexit")
        if self.stamps: h("  s_memrealtime s[%d:%d]" % (sRT0, sRT0 + 1))
        h("  s_load_dwordx16 s[80:95], s[0:1], 0\n  s_load_dwordx4 s[96:99], s[0:1], 64\n  s_load_dwordx2 s[100:101], s[0:1], 80")
        h("""  s_and_b32 s{t0}, s2, 7
  s_lshr_b32 s{t1}, s2, 3
  s_lshr_b32 s{c}, s{t1}, 3
  s_lshl_b32 s{t0}, s{t0}, 2
  s_add_u32 s{c}, s{c}, s{t0}
  s_and_b32 s{j}, s{t1}, 7
  v_lshrrev_b32 v{ta}, 6, v0
  v_and_b32 v{l}, 63, v0
  v_readfirstlane_b32 s{w}, v{ta}
  v_lshlrev_b32 v{l16}, 4, v{l}
  s_waitcnt lgkmcnt(0)""".format(t0=sT0, t1=sT1, c=sC, j=sJ, ta=vTmpA, l=vLane, w=sW, l16=vL16))
        sizes = {S_X: (80, 2048 * 1024), S_QKV: (82, 512 * 3072), S_WO: (84, 512 * 1024), S_W1: (88, 512 * 1024), S_W2: (90, 512 * 1024),
                 S_W3: (92, 512 * 2752), S_W4: (94, 1376 * 1024), S_OUT: (96, 2048 * 1024), S_DBG: (98, 256), S_WS: (100, WS_SIZE)}
        for srd in (S_X, S_W1, S_WS, S_QKV, S_DBG, S_W2, S_W3, S_WO, S_W4, S_OUT):
            p, sz = sizes[srd]
            h("  s_mov_b32 s%d, s%d\n  s_mov_b32 s%d, s%d\n  s_mov_b32 s%d, %d\n  s_mov_b32 s%d, 0x00020000" % (srd, p, srd + 1, p + 1, srd + 2, sz, srd + 3))
        if self.stamps: h("  v_mov_b32 v%d, 0" % vStamp)
        h("  s_cmp_ge_u32 s%d, 4\n  s_cbranch_scc1 Lloader" % sW)


        def touch(srd, nlines_row, row_stride, col0, nrows):
            if not o.get("warm", 1): return
            total = nlines_row * nrows
            per_wg = -(-total // 256)
            assert per_wg <= 128
            d("""  s_mul_i32 s{t0}, s2, {pw}
  s_lshl_b32 s{t1}, s{i}, 5
  s_add_u32 s{t0}, s{t0}, s{t1}
  v_and_b32 v{a}, 31, v{l}
  v_add_u32 v{b}, s{t1}, v{a}
  v_add_u32 v{a}, s{t0}, v{a}
  v_cmp_gt_u32 vcc, {pw}, v{b}""".format(t0=sT0, t1=sT1, pw=per_wg, i=sI, a=lT + 10, b=lT + 11, l=vLane))
            if row_stride == nlines_row * 128:
                d("  v_lshlrev_b32 v%d, 7, v%d" % (lT + 10, lT + 10))
            else:
                assert nlines_row & (nlines_row - 1) == 0
                sh = nlines_row.bit_length() - 1
                d("""  v_lshrrev_b32 v{b}, {sh}, v{a}
  v_mul_u32_u24 v{b}, {rs}, v{b}
  v_and_b32 v{a}, {m}, v{a}
  v_lshl_add_u32 v{a}, v{a}, 7, v{b}""".format(a=lT + 10, b=lT + 11, sh=sh, rs=row_stride, m=nlines_row - 1))
            d("""  v_add_u32 v{a}, {c0}, v{a}
  v_mov_b32 v{b}, 0x80000000
  v_cndmask_b32 v{a}, v{b}, v{a}, vcc""".format(a=lT + 10, b=lT + 11, c0=col0))
            assert per_wg <= 64
            D.vmem("  buffer_load_dword v%d, v%d, s[%d:%d], 0 offen" % (19, lT + 10, srd, srd + 3))
        d("""  s_sub_u32 s{i}, s{w}, 4
  s_lshl_b32 s{tb}, s{c}, 1
  s_add_u32 s{tb}, s{tb}, s{i}
  s_lshl_b32 s{o}, s{c}, 16
  s_lshl_b32 s{t0}, s{i}, 15
  s_add_u32 s{o}, s{o}, s{t0}
  s_mul_i32 s{t0}, s{i}, {r32}
  s_add_u32 m0, s{t0}, {xb}""".format(i=sI, w=sW, tb=sTB, c=sC, o=sOff, t0=sT0, r32=32 * XSTRIDE, xb=XBASE))
        x_seq = None
        for t in range(32):
            pre = "  s_nop 0\n" if t == 0 else "  s_addk_i32 m0, %d\n  s_addk_i32 s%d, 1024\n" % (XSTRIDE, sOff)
            x_seq = D.vmem(pre + "  buffer_load_dwordx4 v%d, s[%d:%d], s%d offen lds" % (vL16, S_X, S_X + 3, sOff))
            if t == 1:
                d("""  s_lshl_b32 s{m0w}, s{i}, 13
  s_lshl_b32 s{t0}, s{j}, 7
  s_lshl_b32 s{b1}, s{i}, 16
  s_add_u32 s{b1}, s{b1}, s{t0}
  s_mul_i32 s{bq}, s{i}, {q64}
  s_add_u32 s{bq}, s{bq}, s{t0}
  s_mul_i32 s{b3}, s{i}, {w64}
  s_mul_i32 s{t1}, s{j}, 384
  s_add_u32 s{b3}, s{b3}, s{t1}
  s_mul_i32 s{b4}, s{i}, {f192}
  s_add_u32 s{b4}, s{b4}, s{t0}
  s_lshl_b32 s{act}, s{tb}, 15
  s_mul_i32 s{actg}, s{tb}, 98304
  v_lshrrev_b32 v{a}, 3, v{l}
  v_and_b32 v{b}, 7, v{l}
  v_lshrrev_b32 v{c}, 1, v{a}
  v_and_b32 v{c}, 1, v{c}
  v_lshlrev_b32 v{c}, 2, v{c}
  v_xor_b32 v{b}, v{b}, v{c}
  v_lshlrev_b32 v{b}, 4, v{b}
  v_lshl_add_u32 v{d1}, v{a}, 10, v{b}
  v_mul_u32_u24 v{d2}, 0xc00, v{a}
  v_add_u32 v{d2}, v{d2}, v{b}
  v_mul_u32_u24 v{d3}, 0xac0, v{a}
  v_add_u32 v{d3}, v{d3}, v{b}""".format(m0w=sM0w, i=sI, t0=sT0, t1=sT1, j=sJ, b1=sB1024, bq=sBqkv, q64=64 * 3072, b3=sB3, w64=64 * 2752, b4=sB4,
                                          f192=192 * 1024, act=sAct, tb=sTB, actg=sActG, a=lT, b=lT + 1, c=lT + 2, l=vLane, d1=lD1024, d2=lD3072, d3=lD2752))
        touch(S_W1, 4096, 4096 * 128, 0, 1)
        touch(S_QKV, 16, 3072, 1024, 512)
        self.assign(); self.pump(o.get('b_pre', 2))

        e("""  s_and_b32 s{i}, s{w}, 1
  s_lshr_b32 s{n}, s{w}, 1
  s_lshl_b32 s{tb}, s{c}, 1
  s_add_u32 s{tb}, s{tb}, s{i}
  v_and_b32 v{a}, 15, v{l}
  v_lshrrev_b32 v{r}, 2, v{a}
  v_and_b32 v{c_}, 3, v{l}
  v_bfe_u32 v{g}, v{l}, 4, 1
  v_lshrrev_b32 v{hf}, 5, v{l}
  v_lshrrev_b32 v{p}, 1, v{c_}
  v_lshl_add_u32 v{p}, v{g}, 1, v{p}
  s_lshl_b32 s{t0}, s{n}, 2
  v_add_u32 v{p}, s{t0}, v{p}
  v_lshrrev_b32 v{x}, 1, v{r}
  v_lshlrev_b32 v{x}, 2, v{x}
  v_xor_b32 v{p}, v{p}, v{x}
  v_and_b32 v{x}, 1, v{c_}
  v_lshlrev_b32 v{x}, 3, v{x}
  v_lshl_add_u32 v{p}, v{p}, 4, v{x}
  v_lshl_add_u32 v{x}, v{hf}, 3, v{r}
  v_lshl_add_u32 v{wn}, v{x}, 7, v{p}
  v_lshl_add_u32 v{x}, v{hf}, 2, v{r}
  v_lshl_add_u32 v{wc}, v{x}, 7, v{p}
  v_add_u32 v{wn1}, 0x10000, v{wn}
  v_add_u32 v{wn2}, 0x20000, v{wn}
  v_add_u32 v{wc1}, 0x10000, v{wc}
  v_add_u32 v{wc2}, 0x20000, v{wc}
  s_lshl_b32 s{t0}, s{i}, 13
  v_add_u32 v{a0}, s{t0}, v{l16}
  v_add_u32 v{a1}, 0x10000, v{a0}
  v_add_u32 v{a2}, 0x20000, v{a0}
  v_and_b32 v{m}, 31, v{l}
  s_lshl_b32 s{t0}, s{i}, 5
  v_add_u32 v{x}, s{t0}, v{m}
  v_mul_u32_u24 v{xa}, {xs}, v{x}
  v_lshl_add_u32 v{xa}, v{hf}, 4, v{xa}
  v_add_u32 v{xa}, {xb}, v{xa}
  s_lshl_b32 s{t0}, s{tb}, 15
  s_lshl_b32 s{t1}, s{j}, 7
  s_add_u32 s{t0}, s{t0}, s{t1}
  s_lshl_b32 s{t1}, s{n}, 6
  s_add_u32 s{t0}, s{t0}, s{t1}
  v_lshl_add_u32 v{oo}, v{m}, 10, s{t0}
  v_lshl_add_u32 v{oo}, v{hf}, 4, v{oo}
  v_lshlrev_b32 v{st}, 3, v{m}
  v_mov_b32 v{x}, 0x80000000
  v_cmp_gt_u32 vcc, 32, v{l}
  v_mov_b32 v{y}, 0
  s_nop 0
  v_cndmask_b32 v{st}, v{x}, v{st}, vcc
  v_cmp_eq_u32 vcc, 0, v0
  s_nop 1
  v_cndmask_b32 v{fv}, v{x}, v{y}, vcc""".format(i=sI, w=sW, n=sN, tb=sTB, c=sC, j=sJ, a=vBig, r=vBig + 1, c_=vBig + 2, g=vBig + 3, hf=vBig + 4, p=vBig + 5,
                                                 x=vBig + 6, m=vBig + 7, y=vBig + 8, l=vLane, t0=sT0, t1=sT1, wn=vWn, wn1=vWn + 1, wn2=vWn + 2, wc=vWc, wc1=vWc + 1,
                                                 wc2=vWc + 2, a0=vA, a1=vA + 1, a2=vA + 2, l16=vL16, xa=vXA, xs=XSTRIDE, xb=XBASE, oo=vOutOff, st=vStOff, fv=vFlagV))
        c0 = -2.0 * math.sqrt(2.0 / math.pi) * math.log2(math.e); c1 = c0 * 0.044715
        e("""  s_mov_b32 s{on}, 0x3f803f80
  s_mov_b32 s{sl}, 0x00003f80
  s_mov_b32 s{sh}, 0x3f800000
  s_mov_b32 s{mh}, 0xffff0000
  s_mov_b32 s{mh1}, 0xffff0000
  s_mov_b32 s{c1}, {c1v}
  s_mov_b32 s{c11}, {c1v}
  s_mov_b32 s{o}, 1.0
  s_mov_b32 s{o1}, 1.0
  s_mov_b32 s{lg}, {lgv}
  s_mov_b32 s{lg1}, {lgv}
  s_mov_b32 s{ep}, {epv}
  s_mov_b32 s{ep1}, {epv}
  s_mov_b32 s{hm}, 0xffff0000
  v_mov_b32 v{c0}, {c0v}
  v_mov_b32 v{c01}, {c0v}""".format(on=sOnes, sl=sSelLo, sh=sSelHi, mh=sMaskHi, mh1=sMaskHi + 1, c1=sC1, c11=sC1 + 1, c1v=fbits(c1), o=sOne, o1=sOne + 1,
                                    lg=sLog2e, lg1=sLog2e + 1, lgv=fbits(math.log2(math.e)), ep=sEps6, ep1=sEps6 + 1, epv=fbits(1e-6), hm=sHiMask,
                                    c0=vC0, c01=vC0 + 1, c0v=fbits(c0)))
        self.stamp("setup")

        self.cur = "x_in"
        self.barrier(dwait=x_seq, budget=0)
        d("""  v_subrev_u32 v{tid}, 256, v0
  v_lshlrev_b32 v{a}, 12, v{tid}
  s_lshl_b32 s{t0}, s{c}, 7
  s_lshl_b32 s{t1}, s{j}, 2
  s_add_u32 s{t0}, s{t0}, s{t1}
  s_lshl_b32 s{t2}, s{j}, 7
  s_lshl_b32 s{t3}, s{c}, 2
  s_add_u32 s{t2}, s{t2}, s{t3}
  v_mov_b32 v{b}, s{t0}
  v_mov_b32 v{c_}, s{t2}
  v_cmp_eq_u32 vcc, 6, v{tid}
  v_mov_b32 v{oob}, 0x80000000
  v_mov_b32 v{z}, 0
  v_cndmask_b32 v{b}, v{b}, v{c_}, vcc
  v_add_u32 v{a}, v{a}, v{b}
  v_cmp_gt_u32 vcc, 7, v{tid}
  s_mov_b32 s{t0}, {fl}
  s_nop 0
  v_cndmask_b32 v{a}, v{oob}, v{a}, vcc""".format(tid=lT + 7, a=lT, b=lT + 1, c_=lT + 2, oob=lT + 3, z=lT + 4, t0=sT0, t1=sT1, t2=sT2, t3=sT3, c=sC, j=sJ, fl=FL_BASE))
        D.vmem("  buffer_store_dword v%d, v%d, s[%d:%d], s%d offen sc1" % (lT + 4, lT, S_WS, S_WS + 3, sT0))
        d("""  v_lshlrev_b32 v{a}, 2, v{tid}
  v_cmp_gt_u32 vcc, 64, v{tid}
  s_lshl_b32 s{t0}, s{j}, 13
  s_lshl_b32 s{t1}, s{c}, 8
  s_add_u32 s{t0}, s{t0}, s{t1}
  s_add_u32 s{t0}, s{t0}, {kv}
  v_cndmask_b32 v{a}, v{oob}, v{a}, vcc
  v_cmp_eq_u32 vcc, 0, v{tid}
  v_mov_b32 v{b}, 0""".format(tid=lT + 7, a=lT + 5, oob=lT + 3, t0=sT0, t1=sT1, j=sJ, c=sC, kv=KV_BASE, b=lT + 6))
        init_seq = D.vmem("  buffer_store_dword v%d, v%d, s[%d:%d], s%d offen sc1" % (lT + 4, lT + 5, S_WS, S_WS + 3, sT0))
        d("  v_cndmask_b32 v%d, v%d, v%d, vcc" % (vFlagV, lT + 3, lT + 6))
        if o.get("codepf", 1):
            d("""  s_getpc_b64 s[{p}:{p1}]
Lpc_here:
  s_sub_u32 s{p}, s{p}, (Lpc_here - {kn})
  s_subb_u32 s{p1}, s{p1}, 0
  s_lshr_b32 s{t0}, s2, 3
  s_lshl_b32 s{t0}, s{t0}, 5
  s_lshl_b32 s{t1}, s{i}, 4
  s_add_u32 s{t0}, s{t0}, s{t1}
  v_and_b32 v{ta}, 15, v{l}
  v_add_u32 v{ta}, s{t0}, v{ta}
  v_lshlrev_b32 v{ta}, 7, v{ta}
  v_min_u32 v{ta}, CODE_PF_MAX, v{ta}
  global_load_dword v{dd}, v{ta}, s[{p}:{p1}]""".format(p=sTime, p1=sTime + 1, kn=KNAME, ta=lTmp, l=vLane, t0=sT0, t1=sT1, i=sI, dd=lT + 8))
            D.vm_seq += 1
        touch(S_W2, 4096, 4096 * 128, 0, 1)
        touch(S_QKV, 8, 3072, 0, 512)
        self.pump(1)
        d("""  v_and_b32 v{pc}, 7, v{l}
  v_lshlrev_b32 v{pc}, 2, v{pc}
  v_and_b32 v{m}, 31, v{l}
  v_lshlrev_b32 v{pk}, 2, v{m}
  s_lshl_b32 s{t1}, s{j}, 7
  v_add_u32 v{pk}, s{t1}, v{pk}
  v_lshrrev_b32 v{x}, 3, v{l}
  v_min_u32 v{x}, 2, v{x}
  v_add_u32 v{x}, s{c}, v{x}
  v_max_u32 v{x}, 1, v{x}
  v_min_u32 v{x}, 32, v{x}
  v_subrev_u32 v{x}, 1, v{x}
  v_lshl_add_u32 v{ph}, v{x}, 7, v{pc}
  s_lshl_b32 s{t0}, s{c}, 7
  v_add_u32 v{pc}, s{t0}, v{pc}
  v_lshlrev_b32 v{pi}, 2, v{l}
  v_and_b32 v{x}, 1, v{l}
  v_cmp_eq_u32 vcc, 0, v{x}
  v_mov_b32 v{x}, 0
  v_mov_b32 v{y}, 8
  v_cndmask_b32 v{ex}, v{x}, v{y}, vcc""".format(pc=lPC, pk=lPK, ph=lPH, pi=lPI, ex=lExp, l=vLane, m=lT, x=lT + 1, y=lT + 2, t0=sT0, t1=sT1, j=sJ, c=sC))

        d("""  s_cmp_eq_u32 s{i}, 0
  s_cselect_b32 s{t0}, 0, 0x80000000
  s_cselect_b32 s{t1}, -1, 0
  v_or_b32 v{pi}, s{t0}, v{pi}
  v_and_b32 v{ex}, s{t1}, v{ex}""".format(i=sI, t0=sT0, t1=sT1, pi=lPI, ex=lExp))
        self.stamp("x_in")
        e("  s_lshl_b32 s%d, s%d, 9\n  v_add_u32 v%d, s%d, v%d" % (sT0, sN, vTmpA, sT0, vXA))
        S0 = vP0
        tseq = []
        for q in range(16):
            tseq.append(C.lds("  ds_read_b128 v[%d:%d], v%d offset:%d" % (vBig + 4 * q, vBig + 4 * q + 3, vTmpA, 32 * q)))
            if q == 7:
                e("  v_mov_b32 v%d, 0\n  v_mov_b32 v%d, 0\n  v_mov_b32 v%d, 0\n  v_mov_b32 v%d, 0" % (S0, S0 + 1, S0 + 2, S0 + 3))
        e("""  s_lshl_b32 s{t0}, s{j}, 7
  s_lshl_b32 s{t1}, s{n}, 6
  s_add_u32 s{t0}, s{t0}, s{t1}
  v_lshrrev_b32 v{x}, 5, v{l}
  v_lshlrev_b32 v{x}, 3, v{x}
  v_sub_u32 v{y}, v{xa}, v{x}
  v_add_u32 v{y}, s{t0}, v{y}""".format(t0=sT0, t1=sT1, j=sJ, n=sN, x=S0 + 6, y=S0 + 7, l=vLane, xa=vXA))
        for q in range(16):
            C.wait_lg(tseq[q])
            for dd in range(4):
                r = vBig + 4 * q + dd; k = 2 * (dd & 1)
                e("  v_dot2c_f32_bf16 v%d, s%d, v%d\n  v_dot2c_f32_bf16 v%d, v%d, v%d" % (S0 + k, sOnes, r, S0 + k + 1, r, r))
            if q == 3:
                for g in range(4):
                    C.lds("  ds_read_b64 v[%d:%d], v%d offset:%d" % (vXres + 2 * g, vXres + 2 * g + 1, S0 + 7, 16 * g))
        C.nop(3)
        e("  v_pk_add_f32 v[%d:%d], v[%d:%d], v[%d:%d]" % (S0, S0 + 1, S0, S0 + 1, S0 + 2, S0 + 3))
        self.hf_combine([S0, S0 + 1], [S0 + 2, S0 + 3])
        e("""  s_lshl_b32 s{t0}, s{i}, 1
  s_add_u32 s{t0}, s{t0}, s{n}
  s_lshl_b32 s{t0}, s{t0}, 8
  s_add_u32 s{t0}, s{t0}, {st}
  v_and_b32 v{x}, 31, v{l}
  v_lshl_add_u32 v{y}, v{x}, 3, s{t0}
  s_lshl_b32 s{t0}, s{i}, 9
  s_add_u32 s{t0}, s{t0}, {st}
  v_lshl_add_u32 v{z}, v{x}, 3, s{t0}""".format(t0=sT0, i=sI, n=sN, st=L_STAT, x=S0 + 6, y=S0 + 8, z=S0 + 9, l=vLane))
        s_ = C.lds("  ds_write_b64 v%d, v[%d:%d]" % (S0 + 8, S0, S0 + 1))
        C.wait_lg(s_)
        self.cur = "xstat"
        self.barrier(budget=o.get("b_xstat", 2))
        touch(S_W3, 11008, 11008 * 128, 0, 1)
        D.wait_vm(init_seq)
        d("  v_mov_b32 v%d, 1\n  s_lshl_b32 s%d, s%d, 3" % (lTmp, sT0, sC))
        D.vmem("  buffer_atomic_add v%d, v%d, s[%d:%d], s%d offen sc1" % (lTmp, vFlagV, S_DBG, S_DBG + 3, sT0))
        C.lds("  ds_read_b64 v[%d:%d], v%d" % (S0, S0 + 1, S0 + 9))
        s_ = C.lds("  ds_read_b64 v[%d:%d], v%d offset:256" % (S0 + 2, S0 + 3, S0 + 9))
        C.wait_lg(s_)
        e("  v_pk_add_f32 v[%d:%d], v[%d:%d], v[%d:%d]" % (S0, S0 + 1, S0, S0 + 1, S0 + 2, S0 + 3))
        self.finish_stats(S0, vM, vR)
        e("""  v_mul_f32 v{q}, v{q}, v{r}
  v_mul_f32 v{q}, v{q}, v{r}
  v_add_f32 v{q}, 0x3727c5ac, v{q}
  v_rsq_f32 v{q}, v{q}
  v_mul_f32 v{mr}, v{m}, v{r}
  v_mul_f32 v{r2}, v{r}, v{q}
  v_sub_f32 v{ng}, 0, v{m}""".format(q=S0 + 1, r=vR, mr=vMR, m=vM, r2=vR2, ng=S0 + 4))
        e("""  s_lshl_b32 s{t0}, s{w}, 7
  s_add_u32 s{t0}, s{t0}, {rs}
  v_and_b32 v{x}, 31, v{l}
  v_lshl_add_u32 v{x}, v{x}, 2, s{t0}""".format(t0=sT0, w=sW, rs=L_RS, x=S0 + 6, l=vLane))
        C.lds("  ds_write_b32 v%d, v%d" % (S0 + 6, vR))
        self.stamp("xstats")
        e("  v_mov_b32 v%d, v%d" % (vM1, S0 + 4))
        def wr_x(q): C.lds("  ds_write_b128 v%d, v[%d:%d] offset:%d" % (vTmpA, vBig + 4 * q, vBig + 4 * q + 3, 32 * q))
        self.center(vM1, vP0, wr_x)
        C.wait_lg(C.lg_seq)
        self.stamp("xcenter")

        def ks_list(n_steps=4, per=8): return [(t, k) for t in range(n_steps) for k in range(per)]
        RG = lambda base, j: "v[%d:%d]" % (base + 4 * (j % 4), base + 4 * (j % 4) + 3)
        AR = lambda g: "a[%d:%d]" % (4 * g, 4 * g + 3)
        ks = []
        for (t, k) in ks_list():
            g = 8 * t + k
            def reads(j, t=t, k=k, g=g):
                C.lds("  ds_read_b128 a[%d:%d], v%d offset:%d" % (4 * g, 4 * g + 3, vXA, 32 * g))
                return self.read_w(W1[t], k, "nat", ring0 + 4 * (j % 4))
            def mf(j, g=g): self.mfma(accA, RG(ring0, j), AR(g), g == 0)
            ks.append(dict(step=t, chunks=[W1[t]] if k == 0 else None, reads=reads, mfma=mf, done=[W1[t]] if k == 7 else []))
        self.gemm("S1", ks, release=0, hooks={1: [lambda: touch(S_WO, 4096, 4096 * 128, 0, 1)], 2: [lambda: touch(S_W4, 11008, 11008 * 128, 0, 1)]})
        self.free_slots += [5, 6, 7, 8]; self.assign(); self.pump(o.get("b_s1e", 3))
        self.stamp("S1m")
        C.nop(12)
        self.scale(accA, vR2)
        self.gelu_pack(accA, vP0, ring0)
        self.store_frags(vP0, H_BASE, 32768, (4, 0))
        self.signal_later(F_H, delay=o.get("h_delay", 1))
        self.stamp("S1e")
        if self.stop == "S1":
            self.barrier(flush_sig=True); return self.end_here()

        ks = []
        for (t, k) in ks_list():
            g = 8 * t + k
            def reads(j, t=t, k=k):
                self.read_w(WK[t], k, "nat", ring0 + 4 * (j % 4))
                return self.read_w(WV[t], k, "nat", ring1 + 4 * (j % 4))
            def mf(j, g=g):
                self.mfma(accA, AR(g), RG(ring0, j), g == 0)
                self.mfma(accB, AR(g), RG(ring1, j), g == 0)
            ks.append(dict(step=t, chunks=[WK[t], WV[t]] if k == 0 else None, reads=reads, mfma=mf, done=[WK[t], WV[t]] if k == 7 else []))
        self.gemm("S2", ks, budget=2, release=o.get("b_s2e", 3),
                  hooks={1: [lambda: self.poll_issue("init")], 2: [lambda: self.poll_check("init"), lambda: self.poll_issue(F_H)]} if o.get("h_early", 0) else
                        {1: [lambda: self.poll_issue("init")], 2: [lambda: self.poll_check("init")], 3: [lambda: self.poll_issue(F_H)]},
                  rel_hooks=[lambda: self.poll_check(F_H)])
        self.stamp("S2m")
        e("""  s_lshl_b32 s{t0}, s{w}, 7
  s_add_u32 s{t0}, s{t0}, {rs}
  v_lshrrev_b32 v{x}, 5, v{l}
  v_lshl_add_u32 v{x}, v{x}, 4, s{t0}""".format(t0=sT0, w=sW, rs=L_RS, x=vTmpA, l=vLane))
        for g in range(4):
            s_ = C.lds("  ds_read_b128 v[%d:%d], v%d offset:%d" % (ring0 + 4 * g, ring0 + 4 * g + 3, vTmpA, 32 * g))
        C.wait_lg(s_)
        C.nop(6)
        for acc in (accA, accB):
            for p in range(8):
                a = acc + 2 * p
                e("  v_pk_mul_f32 v[%d:%d], v[%d:%d], v[%d:%d]" % (a, a + 1, a, a + 1, ring0 + 2 * p, ring0 + 2 * p + 1))
        vPk, vVp = vP0, vP1
        for p in range(8): e("  v_cvt_pk_bf16_f32 v%d, v%d, v%d" % (vVp + p, accB + 2 * p, accB + 2 * p + 1))
        self.phi_pack(accA, vPk, ring1)
        C.nop(2)
        KVD = ring0
        self.mfma(KVD, "v[%d:%d]" % (vPk, vPk + 3), "v[%d:%d]" % (vVp, vVp + 3), True)
        self.mfma(KVD, "v[%d:%d]" % (vPk + 4, vPk + 7), "v[%d:%d]" % (vVp + 4, vVp + 7), False)
        Z = accB
        e("  v_mov_b32 v%d, 0" % Z)
        C.nop(6)
        C.nop(8)
        for r in range(8):
            e("  v_cndmask_b32 v%d, v%d, v%d, s[%d:%d]" % (accA + r, KVD + r, KVD + 8 + r, sMaskHi, sMaskHi + 1))
        for p in range(8): e("  v_dot2c_f32_bf16 v%d, s%d, v%d" % (Z, sOnes, vPk + p))
        KX = L_ST1
        e("""  s_mul_i32 s{t0}, s{w}, 2304
  s_add_u32 s{t0}, s{t0}, {kx}
  v_add_u32 v{a}, s{t0}, v{l16}
  v_lshl_add_u32 v{b}, v{l}, 2, s{t0}""".format(t0=sT0, w=sW, kx=KX, a=Z + 1, b=Z + 2, l16=vL16, l=vLane))
        C.lds("  ds_write_b128 v%d, v[%d:%d]" % (Z + 1, accA, accA + 3))
        C.lds("  ds_write_b128 v%d, v[%d:%d] offset:1024" % (Z + 1, accA + 4, accA + 7))
        s_ = C.lds("  ds_write_b32 v%d, v%d offset:2048" % (Z + 2, Z))
        C.wait_lg(s_)
        kvx = {}
        KH, KT = vP0, ring1
        def kv_fetch():
            e("""  s_mul_i32 s{t0}, s{w}, 2304
  s_xor_b32 s{t1}, s{w}, 1
  s_mul_i32 s{t1}, s{t1}, 2304
  s_lshl_b32 s{t2}, s{i}, 10
  s_add_u32 s{t0}, s{t0}, {kx}
  s_add_u32 s{t1}, s{t1}, {kx}
  v_lshl_add_u32 v{z0}, v{l}, 2, s{t0}
  v_lshl_add_u32 v{z1}, v{l}, 2, s{t1}
  s_add_u32 s{t0}, s{t0}, s{t2}
  s_add_u32 s{t1}, s{t1}, s{t2}
  v_add_u32 v{a}, s{t0}, v{l16}
  v_add_u32 v{b}, s{t1}, v{l16}""".format(t0=sT0, t1=sT1, t2=sT2, w=sW, i=sI, kx=KX, z0=vP0 + 8, z1=vP0 + 9, a=vP0 + 10, b=vP0 + 11, l=vLane, l16=vL16))
            C.lds("  ds_read_b128 v[%d:%d], v%d" % (KH, KH + 3, vP0 + 10))
            C.lds("  ds_read_b128 v[%d:%d], v%d" % (KT, KT + 3, vP0 + 11))
            C.lds("  ds_read_b32 v%d, v%d offset:2048" % (KH + 4, vP0 + 8))
            kvx["seq"] = C.lds("  ds_read_b32 v%d, v%d offset:2048" % (KT + 4, vP0 + 9))
        def kv_sum():
            C.wait_lg(kvx["seq"])
            e("  v_pk_add_f32 v[%d:%d], v[%d:%d], v[%d:%d]" % (KH, KH + 1, KH, KH + 1, KT, KT + 1))
            e("  v_pk_add_f32 v[%d:%d], v[%d:%d], v[%d:%d]" % (KH + 2, KH + 3, KH + 2, KH + 3, KT + 2, KT + 3))
            e("  v_add_f32 v%d, v%d, v%d" % (KH + 4, KH + 4, KT + 4))
            e("""  s_lshl_b32 s{t0}, s{j}, 13
  s_lshl_b32 s{t1}, s{n}, 12
  s_add_u32 s{t0}, s{t0}, s{t1}
  s_add_u32 s{kb}, s{t0}, {kv}
  s_lshl_b32 s{t1}, s{i}, 10
  v_lshl_add_u32 v{a}, v{l}, 2, s{t1}
  s_lshl_b32 s{t1}, s{i}, 31
  v_and_b32 v{b}, 31, v{l}
  v_lshlrev_b32 v{b}, 2, v{b}
  v_or_b32 v{b}, s{t1}, v{b}""".format(t0=sT0, t1=sT1, j=sJ, n=sN, kb=sKvB, kv=KV_BASE, i=sI, a=KH + 5, b=KH + 6, l=vLane))
        def kv_atomic(k):
            if k < 4:
                C.vmem("  buffer_atomic_add_f32 v%d, v%d, s[%d:%d], s%d offen offset:%d sc1" % (KH + k, KH + 5, S_WS, S_WS + 3, sKvB, 256 * k))
            else:
                C.vmem("  buffer_atomic_add_f32 v%d, v%d, s[%d:%d], s%d offen offset:2048 sc1" % (KH + 4, KH + 6, S_WS, S_WS + 3, sKvB))
                self.signal_later(F_KV, delay=o.get("kv_delay", 3))
        sp = o.get("kv_space", 5)
        kv_extras = {0: kv_fetch, 2: kv_sum}
        for k in range(5): kv_extras[4 + sp * k] = (lambda k=k: kv_atomic(k))
        self.stamp("S2e")
        if self.stop == "S2":
            self.barrier(); kv_fetch(); kv_sum()
            for k in range(5): kv_atomic(k)
            self.barrier(flush_sig=True); return self.end_here()

        def t2_steps(WC, AC, acc, nks=None, first0=True):
            ks = []; g = 0
            for t in range(len(WC)):
                per = 8 if nks is None else nks[t]
                for k in range(per):
                    def reads(j, t=t, k=k):
                        self.read_a(AC[t], k, RG(ring1, j))
                        return self.read_w(WC[t], k, "cd", ring0 + 4 * (j % 4))
                    def mf(j, g=g): self.mfma(acc, RG(ring0, j), RG(ring1, j), first0 and g == 0)
                    ks.append(dict(step=t, chunks=[WC[t], AC[t]] if k == 0 else None, reads=reads, mfma=mf, done=[WC[t], AC[t]] if k == per - 1 else []))
                    g += 1
            return ks
        self.gemm("S3", t2_steps(W2, HC, accA), budget=2, release=o.get("b_s3e", 2))
        self.stamp("S3m")
        U = ring0
        for dd in range(8):
            e("  v_lshlrev_b32 v%d, 16, v%d\n  v_and_b32 v%d, s%d, v%d" % (U + 2 * dd, vXres + dd, U + 2 * dd + 1, sHiMask, vXres + dd))
        for p in range(8):
            a = accA + 2 * p
            e("  v_pk_fma_f32 v[%d:%d], v[%d:%d], v[%d:%d], v[%d:%d] op_sel_hi:[1,0,1]" % (a, a + 1, U + 2 * p, U + 2 * p + 1, vR, vR + 1, a, a + 1))
        for p in range(8):
            a = accA + 2 * p
            e("  v_pk_add_f32 v[%d:%d], v[%d:%d], v[%d:%d] op_sel_hi:[1,0] neg_lo:[0,1] neg_hi:[0,1]" % (a, a + 1, a, a + 1, vMR, vMR + 1))
        for p in range(8): e("  v_cvt_pk_bf16_f32 v%d, v%d, v%d" % (vX1res + p, accA + 2 * p, accA + 2 * p + 1))
        self.store_frags(vX1res, X1_BASE, 32768, (4, 0))
        T = vP0
        e("  v_mov_b32 v%d, 0\n  v_mov_b32 v%d, 0" % (T, T + 1))
        for p in range(8):
            e("  v_dot2c_f32_bf16 v%d, s%d, v%d\n  v_dot2c_f32_bf16 v%d, v%d, v%d" % (T, sOnes, vX1res + p, T + 1, vX1res + p, vX1res + p))
        e("""  s_lshl_b32 s{t0}, s{tb}, 12
  s_lshl_b32 s{t1}, s{j}, 9
  s_add_u32 s{t0}, s{t0}, s{t1}
  s_lshl_b32 s{t1}, s{n}, 8
  s_add_u32 s{t0}, s{t0}, s{t1}
  s_add_u32 s{t0}, s{t0}, {st}""".format(t0=sT0, t1=sT1, tb=sTB, j=sJ, n=sN, st=ST1_BASE))
        self.hf_combine([T, T + 1], [T + 2, T + 3])
        C.vmem("  buffer_store_dwordx2 v[%d:%d], v%d, s[%d:%d], s%d offen sc1" % (T, T + 1, vStOff, S_WS, S_WS + 3, sT0))
        self.signal_later(F_X1, delay=o.get("x1_delay", 2))
        self.stamp("S3e")
        if self.stop == "S3":
            self.barrier(flush_sig=True); return self.end_here()

        def t1_steps(WC, acc, order):
            ks = []
            for (t, k) in ks_list():
                g = 8 * t + k
                def reads(j, t=t, k=k): return self.read_w(WC[t], k, order, ring0 + 4 * (j % 4))
                def mf(j, g=g): self.mfma(acc, RG(ring0, j), AR(g), g == 0)
                ks.append(dict(step=t, chunks=[WC[t]] if k == 0 else None, reads=reads, mfma=mf, done=[WC[t]] if k == 7 else []))
            return ks
        aux = {}
        def load_aux_x1():
            d("  s_lshl_b32 s%d, s%d, 13\n  s_lshl_b32 s%d, s%d, 12\n  s_add_u32 s%d, s%d, s%d\n  s_add_u32 s%d, s%d, %d\n  s_add_u32 m0, s%d, %d"
              % (sT0, sC, sT1, sI, sT0, sT0, sT1, sOff, sT0, ST1_BASE, sT1, L_ST1))
            d("  s_nop 0")
            for t in range(4):
                aux["st1"] = D.vmem("  buffer_load_dwordx4 v%d, s[%d:%d], s%d offen offset:%d sc1 lds" % (vL16, S_WS, S_WS + 3, sOff, 1024 * t))
        def load_aux_kv():
            d("  s_lshl_b32 s%d, s%d, 13\n  s_lshl_b32 s%d, s%d, 12\n  s_add_u32 s%d, s%d, s%d\n  s_add_u32 s%d, s%d, %d\n  s_mul_i32 s%d, s%d, 3072\n  s_add_u32 m0, s%d, %d"
              % (sT0, sJ, sT1, sI, sT0, sT0, sT1, sOff, sT0, KV_BASE, sT1, sI, sT1, L_KV))
            d("  s_nop 0")
            for t in range(3):
                aux["kv"] = D.vmem("  buffer_load_dwordx4 v%d, s[%d:%d], s%d offen offset:%d sc1 lds" % (vL16, S_WS, S_WS + 3, sOff, 1024 * t))
        vPq = 18
        self.gemm("S4", t1_steps(WQ, accA, "nat"), budget=1, extras=kv_extras)
        self.stamp("S4m")
        self.poll(F_X1); self.pump(4); load_aux_x1()
        self.pump(o.get("b_s4e", 1))
        C.nop(12)
        self.scale(accA, vR)
        self.phi_pack(accA, vPq, ring1)
        self.stamp("S4e1")
        if self.stop == "S4":
            self.barrier(flush_sig=True); self.poll(F_KV); load_aux_kv(); self.barrier(dwait=aux["kv"])
        self.cur = "x1in"
        if self.stop != "S4":
            self.barrier(need=X1C, dwait=aux["st1"], budget=o.get("b_x1in", 3))
        self.stamp("x1in")

        def o_step():
            e("""  s_mul_i32 s{t0}, s{n}, 3072
  s_add_u32 s{t0}, s{t0}, {kv}
  v_lshl_add_u32 v{a}, v{l}, 2, s{t0}
  v_bfe_u32 v{b}, v{l}, 4, 1
  v_lshlrev_b32 v{b}, 6, v{b}
  v_lshrrev_b32 v{c}, 5, v{l}
  v_lshl_add_u32 v{b}, v{c}, 4, v{b}
  v_add_u32 v{b}, s{t0}, v{b}""".format(t0=sT0, n=sN, kv=L_KV, a=vP1, b=vP1 + 1, c=vP1 + 2, l=vLane))
            vKv, vZ = accA, accA + 8
            for r in range(8):
                C.lds("  ds_read_b32 v%d, v%d offset:%d" % (vKv + r, vP1, 256 * r))
            C.lds("  ds_read_b128 v[%d:%d], v%d offset:2048" % (vZ, vZ + 3, vP1 + 1))
            kv_seq = C.lds("  ds_read_b128 v[%d:%d], v%d offset:2080" % (vZ + 4, vZ + 7, vP1 + 1))
            e("  v_mov_b32 v%d, 0" % vTmpA)
            C.wait_lg(kv_seq)
            P = vP1
            for dd in range(4):
                e("  v_cvt_pk_bf16_f32 v%d, v%d, v%d" % (P + dd, vKv + 2 * dd, vKv + 2 * dd + 1))
                e("  v_cvt_pk_bf16_f32 v%d, v%d, v%d" % (P + 4 + dd, vZ + 2 * dd, vZ + 2 * dd + 1))
            MA = ring1
            for dd in range(8):
                e("  v_cndmask_b32 v%d, v%d, v%d, s[%d:%d]" % (MA + dd, P + dd, vTmpA, sMaskHi, sMaskHi + 1))
                e("  v_cndmask_b32 v%d, v%d, v%d, s[%d:%d]" % (MA + 8 + dd, vTmpA, P + dd, sMaskHi, sMaskHi + 1))
            C.nop(2)
            R_ = lambda a: "v[%d:%d]" % (a, a + 3)
            self.mfma(accA, R_(MA), R_(vPq), True)
            self.mfma(accB, R_(MA + 4), R_(vPq), True)
            self.mfma(accA, R_(MA + 8), R_(vPq + 4), False)
            self.mfma(accB, R_(MA + 12), R_(vPq + 4), False)
            C.nop(16)
            e("  v_add_f32 v{a}, 0x358637bd, v{d0}\n  v_add_f32 v{b}, 0x358637bd, v{d1}\n  v_rcp_f32 v{a}, v{a}\n  v_rcp_f32 v{b}, v{b}".format(a=ring0, b=ring0 + 2, d0=accB, d1=accB + 8))
            C.nop(1)
            for p in range(8):
                a = accA + 2 * p; r = ring0 if p < 4 else ring0 + 2
                e("  v_pk_mul_f32 v[%d:%d], v[%d:%d], v[%d:%d] op_sel_hi:[1,0]" % (a, a + 1, a, a + 1, r, r + 1))
            for p in range(8): e("  v_cvt_pk_bf16_f32 v%d, v%d, v%d" % (vP1 + p, accA + 2 * p, accA + 2 * p + 1))
            self.store_frags(vP1, O_BASE, 32768, (4, 0))
            self.signal_later(F_O, delay=1)
        if self.stop == "S4":
            o_step(); self.barrier(flush_sig=True); return self.end_here()

        sl = [X1C[q].slot * SLOT for q in range(4)]
        e("""  s_mul_i32 s{t0}, s{n}, {d02}
  s_add_u32 s{t0}, s{t0}, {a0}
  s_mul_i32 s{t1}, s{n}, {d13}
  s_add_u32 s{t1}, s{t1}, {a1}
  s_lshl_b32 s{t2}, s{i}, 13
  s_add_u32 s{t0}, s{t0}, s{t2}
  s_add_u32 s{t1}, s{t1}, s{t2}
  v_add_u32 v{x}, s{t0}, v{l16}
  v_add_u32 v{y}, s{t1}, v{l16}
  v_and_b32 v{a}, 31, v{l}
  v_lshlrev_b32 v{a}, 3, v{a}
  v_lshrrev_b32 v{b}, 5, v{l}
  v_lshl_add_u32 v{a}, v{b}, 11, v{a}
  s_lshl_b32 s{t0}, s{i}, 12
  s_add_u32 s{t0}, s{t0}, {st}
  v_add_u32 v{a}, s{t0}, v{a}""".format(n=sN, t0=sT0, t1=sT1, t2=sT2, i=sI, a0=sl[0], a1=sl[1], d02=(sl[2] - sl[0]), d13=(sl[3] - sl[1]),
                                          x=vTmpA, y=vXA, l16=vL16, a=vStOff, b=vP0, l=vLane, st=L_ST1))
        for q in range(8):
            s_ = C.lds("  ds_read_b64 v[%d:%d], v%d offset:%d" % (vP0 + 2 * q, vP0 + 2 * q + 1, vStOff, 256 * q))
        tseq = []
        for q in range(6):
            tseq.append(C.lds("  ds_read_b128 v[%d:%d], v%d offset:%d" % (vBig + 4 * q, vBig + 4 * q + 3, vTmpA if q < 8 else vXA, 1024 * (q & 7))))
        C.wait_lg(s_)
        for q in range(1, 8):
            e("  v_pk_add_f32 v[%d:%d], v[%d:%d], v[%d:%d]" % (vP0, vP0 + 1, vP0, vP0 + 1, vP0 + 2 * q, vP0 + 2 * q + 1))
        for q in range(6, 16):
            tseq.append(C.lds("  ds_read_b128 v[%d:%d], v%d offset:%d" % (vBig + 4 * q, vBig + 4 * q + 3, vTmpA if q < 8 else vXA, 1024 * (q & 7))))
        self.hf_combine([vP0, vP0 + 1], [vP0 + 2, vP0 + 3])
        self.finish_stats(vP0, vM1, vR1)
        e("  v_sub_f32 v%d, 0, v%d" % (vM1, vM1))
        def wr_x1(q): C.lds("  ds_write_b128 v%d, v[%d:%d] offset:%d" % (vTmpA if q < 8 else vXA, vBig + 4 * q, vBig + 4 * q + 3, 1024 * (q & 7)))
        C.wait_lg(tseq[15])
        self.center(vM1, vP0, wr_x1)
        C.wait_lg(C.lg_seq)
        self.cur = "x1c"
        self.barrier(budget=1)
        self.stamp("x1center")

        for p in range(3):
            if p == 0:
                ks = []
                for (t, k) in ks_list():
                    g = 8 * t + k
                    def reads(j, t=t, k=k, g=g):
                        self.read_a(X1C[t], k, AR(g))
                        return self.read_w(W3[0][t], k, "cd", ring0 + 4 * (j % 4))
                    def mf(j, g=g): self.mfma(accA, RG(ring0, j), AR(g), g == 0)
                    ks.append(dict(step=t, chunks=[W3[0][t]] if k == 0 else None, reads=reads, mfma=mf, done=[W3[0][t], X1C[t]] if k == 7 else []))
                self.gemm("S5_0", ks, budget=2, release=o.get("b_s5e", 3))
            elif p == 1:
                def kvchk():
                    self.poll_check(F_KV); load_aux_kv()
                self.gemm("S5_1", t1_steps(W3[1], accA, "cd"), hooks={1: [lambda: self.poll_issue(F_KV)], 2: [kvchk]}, budget=o.get("b_s5", 1), release=None)
                self.cur = "S5_1.end"
                self.barrier(dwait=aux["kv"], budget=o.get("b_s5e", 3))
            else:
                self.gemm("S5_2", t1_steps(W3[2], accA, "cd"), budget=o.get("b_s5", 1), release=o.get("b_s5e", 3),
                          hooks={1: [lambda: self.poll_issue(F_G0)], 2: [lambda: self.poll_check(F_G0)]})
            self.stamp("S5m%d" % p)
            C.nop(12)
            self.scale(accA, vR1)
            self.gelu_pack(accA, vP0, ring1)
            self.store_frags(vP0, G_BASE, 98304, (12, 4 * p))
            self.signal_later(F_G0 + p, delay=1 if p < 2 else o.get("g2_delay", 1))
            self.stamp("S5e%d" % p)
            if p == 1:
                o_step()
                self.stamp("ostep")
        if self.stop == "S5":
            self.barrier(flush_sig=True); return self.end_here()

        nks = {0: [8, 8, 8, 6], 1: [8, 8, 8, 4], 2: [8, 8, 8, 4]}
        self.gemm("S7_0", t2_steps(W4[0], GC[0], accF, nks=nks[0], first0=True), budget=2,
                  hooks={1: [lambda: self.poll_issue(F_O)], 2: [lambda: self.poll_check(F_O)]})
        self.stamp("S7m0")
        self.gemm("S6", t2_steps(WO, OC, accF, first0=False), budget=2, hooks={1: [lambda: self.poll_issue(F_G1)], 2: [lambda: self.poll_check(F_G1)]})
        self.stamp("S6m")
        self.gemm("S7_1", t2_steps(W4[1], GC[1], accF, nks=nks[1], first0=False), budget=2,
                  hooks={1: [lambda: self.poll_issue(F_G2)], 2: [lambda: self.poll_check(F_G2)]})
        self.stamp("S7m1")
        self.gemm("S7_2", t2_steps(W4[2], GC[2], accF, nks=nks[2], first0=False), budget=2)
        self.stamp("S7m2")
        U = ring0; X = ring1
        for dd in range(8):
            e("  v_lshlrev_b32 v%d, 16, v%d\n  v_and_b32 v%d, s%d, v%d" % (U + 2 * dd, vXres + dd, U + 2 * dd + 1, sHiMask, vXres + dd))
            e("  v_lshlrev_b32 v%d, 16, v%d\n  v_and_b32 v%d, s%d, v%d" % (X + 2 * dd, vX1res + dd, X + 2 * dd + 1, sHiMask, vX1res + dd))
        for p in range(8):
            e("  v_pk_add_f32 v[%d:%d], v[%d:%d], v[%d:%d]" % (U + 2 * p, U + 2 * p + 1, U + 2 * p, U + 2 * p + 1, X + 2 * p, X + 2 * p + 1))
        for p in range(8):
            a = accF + 2 * p
            e("  v_pk_add_f32 v[%d:%d], v[%d:%d], v[%d:%d]" % (a, a + 1, a, a + 1, U + 2 * p, U + 2 * p + 1))
        Dd = vP0
        for p in range(8): e("  v_cvt_pk_bf16_f32 v%d, v%d, v%d" % (Dd + p, accF + 2 * p, accF + 2 * p + 1))
        C.nop(2)
        for gp in range(2):
            e("  v_permlane32_swap_b32 v%d, v%d\n  v_permlane32_swap_b32 v%d, v%d" % (Dd + 4 * gp, Dd + 4 * gp + 2, Dd + 4 * gp + 1, Dd + 4 * gp + 3))
        C.nop(1)
        for gp in range(2):
            C.vmem("  buffer_store_dwordx4 v[%d:%d], v%d, s[%d:%d], 0 offen offset:%d" % (Dd + 4 * gp, Dd + 4 * gp + 3, vOutOff, S_OUT, S_OUT + 3, 32 * gp))
        self.stamp("end")
        self.finish()

    def text(self):
        self.build()
        hdr = open("cdna_kernels/%s.s.ref" % KNAME.replace("_kernel", "")).read().split("\n")
        head = []
        for l in hdr:
            if l.startswith("; @launch"): head.append("; @launch grid=(256,1,1) block=(384,1,1) lds=%d" % LDS_BYTES)
            elif l.startswith(";"): head.append(l)
            else: break
        t = "\n".join(head) + "\n"
        t += '.amdgcn_target "amdgcn-amd-amdhsa--gfx950"\n.text\n.globl %s\n.p2align 8\n.type %s,@function\n%s:\n' % (KNAME, KNAME, KNAME)
        t += "\n".join(self.head.L) + "\n" + "\n".join(self.C.L) + "\n.p2align 6\nLloader:\n" + "\n".join(self.D.L) + "\n" + "\n".join(self.tail)
        t += "\nLexit:\n  s_endpgm\nLcode_end:\n"
        t = t.replace("CODE_PF_MAX", "(Lcode_end - %s - 4)" % KNAME)
        t += """.section .rodata,"a"
.p2align 6
.amdhsa_kernel %s
  .amdhsa_next_free_vgpr 256
  .amdhsa_next_free_sgpr 102
  .amdhsa_accum_offset 128
  .amdhsa_group_segment_fixed_size 0
  .amdhsa_kernarg_size 88
  .amdhsa_user_sgpr_count 2
  .amdhsa_user_sgpr_kernarg_segment_ptr 1
  .amdhsa_system_sgpr_workgroup_id_x 1
  .amdhsa_float_denorm_mode_32 3
.end_amdhsa_kernel
""" % KNAME
        return t


if __name__ == "__main__":
    import argparse
    ap = argparse.ArgumentParser()
    ap.add_argument("-o", default="k.s")
    ap.add_argument("--stop", default=None)
    ap.add_argument("--stamps", action="store_true")
    ap.add_argument("--trace", action="store_true")
    ap.add_argument("--opt", action="append", default=[])
    a = ap.parse_args()
    opts = {}
    for kv in a.opt:
        k, v = kv.split("="); opts[k] = int(v)
    g = Gen(stop=a.stop, stamps=a.stamps, opts=opts)
    t = g.text()
    open(a.o, "w").write(t)
    open(a.o + ".stamps", "w").write("\n".join(g.stamp_names) + "\n--\n" + "\n".join(g.lstamp_names[:60]))
    if a.trace: print("\n".join(g.trace))
    print("lines", len(t.split("\n")), "stamps", len(g.stamp_names), "barriers", g.nbar)
```

```python
import sys, math, struct

KNAME = "parallel_sum__linear_attn_block__mixer_s_mlp__prompt_kernel"

H_BASE   = 0x000000
X1_BASE  = 0x200000
O_BASE   = 0x400000
G_BASE   = 0x600000
KV_BASE  = 0xC00000
FL_BASE  = 0xC20000
ST1_BASE = 0xC40000
STAMP_BASE = 0xD00000
WS_SIZE  = 0x1000000
F_H, F_X1, F_O, F_G0, F_G1, F_G2, F_KV = range(7)

SLOT = 16384
XBASE = 5 * SLOT
XSTRIDE = 1040
SCR = XBASE + 64 * XSTRIDE
L_RS = SCR
L_CS = L_RS + 1024
L_STAT = L_CS
L_KX = L_CS
L_ST1 = L_KX + 4608
L_KV = L_KX
LDS_BYTES = 163840
assert L_ST1 + 8192 <= LDS_BYTES

S_X, S_QKV, S_WO, S_W1, S_W2, S_W3, S_W4, S_OUT, S_WS, S_DBG = [4 + 4 * k for k in range(10)]
sC, sJ, sW, sI, sN = 44, 45, 46, 47, 48
sM0w, sB1024, sBqkv, sB3, sB4 = 49, 50, 51, 52, 53
sAct, sActG = 54, 55
sOff, sT0, sT1, sTB = 57, 58, 59, 60
sOnes = 61
sMaskHi = 62
sC1 = 64
sOne = 66
sLog2e = 68
sEps6 = 70
sTime = 72
sTmo = 74
sHiMask = 75
sT2, sT3 = 76, 77
sRT0 = 78
sZero = 56
sKvB = 80

vLane, vL16 = 1, 2
vWn, vWc, vA = 3, 6, 9
vXA, vTmpA, vFlagV, vOutOff, vStOff, vStamp = 12, 13, 14, 15, 16, 17
vM, vR, vR2, vMR = 18, 20, 22, 24
vM1, vR1 = 22, 24
vNM, vNM1 = 19, 21
vC0 = 26
vSel = 28
vXres, vX1res, vPq = 32, 40, 48
accA, accB = 56, 72
accF = accB
ZA, ZB = 88, 104
ring0, ring1, csA, csB = 88, 100, 112, 116
vP0 = 120
vBig = 56
lD1024, lD3072, lD2752, lHs, lTmp, lPH, lPC, lPK, lPI, lExp, lT, lPoll = 3, 4, 5, 6, 7, 9, 10, 11, 12, 13, 20, 32


class Chunk:
    def __init__(self, name, kind, flag=None, **kw):
        self.name = name; self.kind = kind; self.flag = flag; self.kw = kw
        self.slot = None; self.last_vm = None
        self.last_read = None; self.reads_done = False; self.emitted = False; self.arrived = False
        self.cost = 384 if name.startswith('W3') else 256


class Stream:
    def __init__(self, name):
        self.name = name; self.L = []
        self.vm_seq = 0; self.vm_done = 0; self.lg_seq = 0; self.lg_done = 0
    def e(self, s):
        for l in s.strip("\n").split("\n"): self.L.append(l)
    def vmem(self, s):
        if self.vm_seq - self.vm_done >= 60:
            self.wait_vm(self.vm_seq - 52)
        self.e(s); self.vm_seq += 1
        return self.vm_seq
    def lds(self, s):
        self.e(s); self.lg_seq += 1
        return self.lg_seq
    def wait_vm(self, seq):
        if seq is None or seq <= self.vm_done: return
        self.e("  s_waitcnt vmcnt(%d)" % (self.vm_seq - seq)); self.vm_done = seq
    def wait_lg(self, seq):
        if seq is None or seq <= self.lg_done: return
        n = min(self.lg_seq - seq, 15)
        self.e("  s_waitcnt lgkmcnt(%d)" % n); self.lg_done = self.lg_seq - n
    def nop(self, n):
        while n > 0:
            k = min(n, 16); self.e("  s_nop %d" % (k - 1)); n -= k


def fbits(x): return "0x%08x" % struct.unpack("<I", struct.pack("<f", x))[0]


class Gen:
    def __init__(self, stop=None, stamps=False, opts=None):
        self.C = Stream("C"); self.D = Stream("D"); self.tail = []
        self.stop = stop; self.stamps = stamps; self.stamp_names = []; self.lstamp_names = []
        self.opts = opts or {}
        self.lab = 0
        self.free_slots = []; self.order = []; self.order_pos = 0
        self.fifo = []; self.blocked = []; self.flags_ok = set(); self.live = []
        self.poll_seq = {}; self.pending_sig = []; self.trace = []; self.cur = "prologue"; self.nbar = 0

    def label(self, b):
        self.lab += 1; return "%s_%d" % (b, self.lab)
    def stamp(self, name):
        if not self.stamps: return
        k = len(self.stamp_names); self.stamp_names.append(name); assert k < 60
        self.C.e("  s_memtime s[%d:%d]\n  s_waitcnt lgkmcnt(0)\n  v_writelane_b32 v%d, s%d, %d" % (sTime, sTime + 1, vStamp, sTime, k))
        self.C.lg_done = self.C.lg_seq
    def lstamp(self, name):
        if not self.stamps: return
        k = len(self.lstamp_names); self.lstamp_names.append(name)
        if k >= 60: return
        self.D.e("  s_memtime s[%d:%d]\n  s_waitcnt lgkmcnt(0)\n  v_writelane_b32 v%d, s%d, %d" % (sTime, sTime + 1, vStamp, sTime, k))

    def make_atoms(self, ch):
        slot = ch.slot * SLOT; k = ch.kind; kw = ch.kw; at = []
        if k == "W":
            srd, vd, base, lit, stride = kw["srd"], kw["vd"], kw["base"], kw["lit"], kw["stride"]
            for t in range(8):
                if t == 0:
                    pre = "  s_add_u32 m0, s%d, %d\n  s_add_u32 s%d, s%d, %d" % (sM0w, slot, sOff, base, lit)
                else:
                    pre = "  s_addk_i32 m0, 1024\n  s_addk_i32 s%d, %d" % (sOff, 8 * stride)
                at.append(pre + "\n  buffer_load_dwordx4 v%d, s[%d:%d], s%d offen lds" % (vd, srd, srd + 3, sOff))
        elif k == "A":
            base, lits, vo = kw["base"], kw["lits"], kw.get("vo", vL16)
            for g in range(2):
                for t in range(4):
                    pre = ""
                    if t == 0:
                        if g == 0: pre = kw.get("pre", "")
                        pre += "  s_add_u32 m0, s%d, %d\n  s_add_u32 s%d, s%d, %d\n" % (sM0w, slot + 4096 * g, sOff, base, lits[g])
                    at.append(pre + "  buffer_load_dwordx4 v%d, s[%d:%d], s%d offen offset:%d sc1 lds" % (vo, S_WS, S_WS + 3, sOff, 1024 * t))
        else:
            raise ValueError(k)
        return at
    def assign(self):
        while self.free_slots and self.order_pos < len(self.order):
            ch = self.order[self.order_pos]; self.order_pos += 1
            ch.slot = self.free_slots.pop(0); self.live.append(ch)
            self.trace.append("%s: assign %s -> slot %d" % (self.cur, ch.name, ch.slot))
            if ch.flag is not None and ch.flag not in self.flags_ok: self.blocked.append(ch)
            else: self.fifo.append(ch)
    def unblock(self, flag):
        self.flags_ok.add(flag)
        first = [ch for ch in self.blocked if ch.flag == flag]
        self.blocked = [ch for ch in self.blocked if ch.flag != flag]
        self.fifo = first + self.fifo
    def pump(self, budget):
        avail = budget + self.carry - self.spent
        while self.fifo and self.fifo[0].cost <= avail:
            avail -= self.fifo[0].cost
            self.issue_one()
        self.carry = min(max(avail, 0), 200) if budget > 0 else 0
        self.spent = 0
    def issue_one(self):
        ch = self.fifo.pop(0)
        for a in self.make_atoms(ch): ch.last_vm = self.D.vmem(a)
        ch.emitted = True
        self.trace.append("%s: issued %s" % (self.cur, ch.name))
        return ch
    carry = 0; spent = 0
    def pump_until(self, chunks):
        for ch in chunks:
            assert ch.slot is not None, "chunk %s has no slot at %s" % (ch.name, self.cur)
            assert ch not in self.blocked, "chunk %s still blocked at %s" % (ch.name, self.cur)
            while not ch.emitted: self.issue_one()

    def barrier(self, flush_sig=False, budget=1, need=(), dwait=None):
        C, D = self.C, self.D
        todo = [c for c in need if not c.arrived]
        self.pump_until(todo)
        if todo: D.wait_vm(max(c.last_vm for c in todo))
        if dwait is not None: D.wait_vm(dwait)
        fire = []
        for sg in list(self.pending_sig):
            sg["age"] += 1
            if flush_sig or sg["age"] > sg["delay"]:
                C.wait_vm(sg["seq"]); fire.append(sg); self.pending_sig.remove(sg)
        self.nbar += 1
        C.e("  s_barrier"); D.e("  s_barrier")
        self.lstamp("%s" % self.cur)
        for c in todo: c.arrived = True
        for sg in fire: self.fire_signal(sg)
        for ch in list(self.live):
            if ch.reads_done and ch.last_read is not None and ch.last_read <= C.lg_done:
                self.live.remove(ch); self.free_slots.append(ch.slot)
                self.trace.append("%s: free %s (slot %d)" % (self.cur, ch.name, ch.slot))
        self.assign()
        self.pump(budget)

    def signal_later(self, ftype, delay=0):
        self.pending_sig.append(dict(ftype=ftype, seq=self.C.vm_seq, delay=delay, age=0))
    def fire_signal(self, sg):
        C = self.C; ft = sg["ftype"]
        self.trace.append("%s: signal %d" % (self.cur, ft))
        a, b = (sJ, sC) if ft == F_KV else (sC, sJ)
        C.e("  s_lshl_b32 s%d, s%d, 7\n  s_lshl_b32 s%d, s%d, 2" % (sT2, a, sT3, b))
        C.e("  s_add_u32 s%d, s%d, s%d\n  s_add_u32 s%d, s%d, %d" % (sT2, sT2, sT3, sT2, sT2, FL_BASE + ft * 4096))
        C.e("  v_mov_b32 v%d, 1" % vTmpA)
        C.vmem("  buffer_store_dword v%d, v%d, s[%d:%d], s%d offen sc1" % (vTmpA, vFlagV, S_WS, S_WS + 3, sT2))
    def poll_text(self, what):
        r = lPoll + (0 if what == "init" else 1 + what)
        if what == "init":
            return "", "  buffer_load_dword v%d, v%d, s[%d:%d], 0 offen sc1" % (r, lPI, S_DBG, S_DBG + 3), "  v_cmp_eq_u32 vcc, v%d, v%d" % (lExp, r)
        va = {F_H: lPH, F_KV: lPK}.get(what, lPC)
        return ("  s_mov_b32 s%d, %d\n" % (sT2, FL_BASE + what * 4096),
                "  buffer_load_dword v%d, v%d, s[%d:%d], s%d offen sc1" % (r, va, S_WS, S_WS + 3, sT2), "  v_cmp_eq_u32 vcc, 1, v%d" % r)
    def poll_issue(self, what):
        pre, t, _ = self.poll_text(what)
        self.poll_seq[what] = self.D.vmem(pre + t)
    def poll_check(self, what):
        D = self.D
        pre, t, cmp_ = self.poll_text(what)
        D.wait_vm(self.poll_seq[what])
        slow = self.label("Lslow"); done = self.label("Ldone"); spin = self.label("Lspin")
        D.e(cmp_ + "\n  s_cmp_eq_u64 vcc, -1\n  s_cbranch_scc0 %s\n%s:" % (slow, done))
        self.tail.append("%s:\n  s_mov_b32 s%d, 4000\n%s%s:\n%s\n  s_waitcnt vmcnt(0)\n%s\n  s_cmp_eq_u64 vcc, -1\n  s_cbranch_scc1 %s\n"
                         "  s_sleep %d\n  s_sub_u32 s%d, s%d, 1\n  s_cmp_lg_u32 s%d, 0\n  s_cbranch_scc1 %s\n  s_branch %s"
                         % (slow, sTmo, pre, spin, t, cmp_, done, self.opts.get("spin_sleep", 2), sTmo, sTmo, sTmo, spin, done))
        self.trace.append("%s: poll %s" % (self.cur, what))
        self.lstamp("poll_%s" % what)
        if what != "init": self.unblock(what)
    def poll(self, what):
        self.poll_issue(what); self.poll_check(what)

    @staticmethod
    def win(base_reg, addr): return base_reg + (addr >> 16), addr & 0xffff
    def read_w(self, ch, ks, order, dst):
        a = ch.slot * SLOT + ks * 2048
        reg, off = self.win(vWn if order == "nat" else vWc, a)
        second = 512 if order == "nat" else 1024
        self.C.lds("  ds_read_b64_tr_b16 v[%d:%d], v%d offset:%d" % (dst, dst + 1, reg, off))
        s = self.C.lds("  ds_read_b64_tr_b16 v[%d:%d], v%d offset:%d" % (dst + 2, dst + 3, reg, off + second))
        ch.last_read = s
        return s
    def read_a(self, ch, ks, dst):
        a = ch.slot * SLOT + ks * 1024
        reg, off = self.win(vA, a)
        s = self.C.lds("  ds_read_b128 %s, v%d offset:%d" % (dst, reg, off))
        ch.last_read = s
        return s

    def gemm(self, name, ksteps, hooks=None, budget=1, release=None, extras=None, rel_hooks=(), early=True, dwait0=None, dwait_rel=None):
        hooks = hooks or {}
        C = self.C
        LA = 2; n = len(ksteps); seqs = [None] * n
        def fetch(j):
            k = ksteps[j]
            if k.get("chunks"):
                self.cur = "%s.%d" % (name, k["step"])
                hk = hooks.get(k["step"], [])
                b = budget[k["step"]] if isinstance(budget, (list, tuple)) else budget
                if early and j > 0: C.wait_lg(C.lg_seq)
                self.barrier(need=k["chunks"], budget=0 if hk else b, dwait=dwait0() if (dwait0 and j == 0) else None)
                if hk:
                    for fn in hk: fn()
                    self.pump(b)
            seqs[j] = k["reads"](j)
            for ch in k.get("done", []): ch.reads_done = True
        for j in range(min(LA, n)): fetch(j)
        for idx in range(n):
            C.wait_lg(seqs[idx])
            ksteps[idx]["mfma"](idx)
            if idx + LA < n: fetch(idx + LA)
            if ksteps[idx].get("post"): ksteps[idx]["post"](idx)
            if extras and idx in extras: extras[idx]()
        self.cur = name + ".end"
        if release is not None:
            self.barrier(budget=0 if rel_hooks else release, dwait=dwait_rel() if dwait_rel else None)
            if rel_hooks:
                for fn in rel_hooks: fn()
                self.pump(release)

    def mfma(self, acc, a, b, first):
        c = "0" if first else "v[%d:%d]" % (acc, acc + 15)
        self.C.e("  v_mfma_f32_32x32x16_bf16 v[%d:%d], %s, %s, %s" % (acc, acc + 15, a, b, c))

    def hf_combine(self, regs, tmps):
        C = self.C
        for r, t in zip(regs, tmps): C.e("  v_mov_b32 v%d, v%d" % (t, r))
        C.nop(2)
        for r, t in zip(regs, tmps): C.e("  v_permlane32_swap_b32 v%d, v%d" % (r, t))
        C.nop(1)
        for r, t in zip(regs, tmps): C.e("  v_add_f32 v%d, v%d, v%d" % (r, r, t))
    def cs_mfma(self, cs, frag, first):
        c = "0" if first else "v[%d:%d]" % (cs, cs + 3)
        self.C.e("  v_mfma_f32_16x16x32_bf16 v[%d:%d], v[%d:%d], %s, %s" % (cs, cs + 3, vSel, vSel + 3, frag, c))
    def rescale(self, acc, vnegm, vr):
        e = self.C.e
        for rr in range(16):
            g, r4 = rr // 4, rr % 4
            src = csA + (1 if g >= 2 else 0)
            for hf in range(2):
                f = (8 * g + 4 * hf + r4) % 16
                e("  v_fmac_f32_dpp v%d, v%d, v%d row_newbcast:%d row_mask:0x%x bank_mask:0xf" % (acc + rr, src, vnegm, f, 0x3 if hf == 0 else 0xc))
        for p in range(8):
            a = acc + 2 * p
            e("  v_pk_mul_f32 v[%d:%d], v[%d:%d], v[%d:%d] op_sel_hi:[1,0]" % (a, a + 1, a, a + 1, vr, vr + 1))
    def gelu_pack(self, acc, dst, T):
        e = self.C.e; P = range(8)
        for p in P: e("  v_pk_mul_f32 v[%d:%d], v[%d:%d], v[%d:%d]" % (T + 2 * p, T + 2 * p + 1, acc + 2 * p, acc + 2 * p + 1, acc + 2 * p, acc + 2 * p + 1))
        for p in P: e("  v_pk_fma_f32 v[%d:%d], v[%d:%d], s[%d:%d], v[%d:%d]" % (T + 2 * p, T + 2 * p + 1, T + 2 * p, T + 2 * p + 1, sC1, sC1 + 1, vC0, vC0 + 1))
        for p in P: e("  v_pk_mul_f32 v[%d:%d], v[%d:%d], v[%d:%d]" % (T + 2 * p, T + 2 * p + 1, T + 2 * p, T + 2 * p + 1, acc + 2 * p, acc + 2 * p + 1))
        for q in range(16): e("  v_exp_f32 v%d, v%d" % (T + q, T + q))
        for p in P: e("  v_pk_add_f32 v[%d:%d], v[%d:%d], s[%d:%d]" % (T + 2 * p, T + 2 * p + 1, T + 2 * p, T + 2 * p + 1, sOne, sOne + 1))
        for q in range(16): e("  v_rcp_f32 v%d, v%d" % (T + q, T + q))
        for p in P: e("  v_pk_mul_f32 v[%d:%d], v[%d:%d], v[%d:%d]" % (acc + 2 * p, acc + 2 * p + 1, acc + 2 * p, acc + 2 * p + 1, T + 2 * p, T + 2 * p + 1))
        for p in P: e("  v_cvt_pk_bf16_f32 v%d, v%d, v%d" % (dst + p, acc + 2 * p, acc + 2 * p + 1))
    def phi_pack(self, acc, dst, T):
        e = self.C.e; P = range(8)
        for p in P: e("  v_pk_mul_f32 v[%d:%d], v[%d:%d], s[%d:%d]" % (T + 2 * p, T + 2 * p + 1, acc + 2 * p, acc + 2 * p + 1, sLog2e, sLog2e + 1))
        for q in range(16): e("  v_min_f32 v%d, 0, v%d" % (T + q, T + q))
        for q in range(16): e("  v_exp_f32 v%d, v%d" % (T + q, T + q))
        for q in range(16): e("  v_max_f32 v%d, 0, v%d" % (acc + q, acc + q))
        for p in P: e("  v_pk_add_f32 v[%d:%d], v[%d:%d], v[%d:%d]" % (acc + 2 * p, acc + 2 * p + 1, acc + 2 * p, acc + 2 * p + 1, T + 2 * p, T + 2 * p + 1))
        for p in P: e("  v_pk_add_f32 v[%d:%d], v[%d:%d], s[%d:%d]" % (acc + 2 * p, acc + 2 * p + 1, acc + 2 * p, acc + 2 * p + 1, sEps6, sEps6 + 1))
        for p in P: e("  v_cvt_pk_bf16_f32 v%d, v%d, v%d" % (dst + p, acc + 2 * p, acc + 2 * p + 1))
    def store_frags(self, src, base, tbstride, ks_expr):
        C = self.C; mul_j, add = ks_expr
        C.e("  s_mul_i32 s%d, s%d, %d" % (sT0, sTB, tbstride))
        C.e("  s_mul_i32 s%d, s%d, %d" % (sT1, sJ, mul_j * 1024))
        C.e("  s_add_u32 s%d, s%d, s%d" % (sT0, sT0, sT1))
        C.e("  s_lshl_b32 s%d, s%d, 11" % (sT1, sN))
        C.e("  s_add_u32 s%d, s%d, s%d" % (sT0, sT0, sT1))
        C.e("  s_add_u32 s%d, s%d, %d" % (sT0, sT0, base + add * 1024))
        C.vmem("  buffer_store_dwordx4 v[%d:%d], v%d, s[%d:%d], s%d offen sc1" % (src, src + 3, vL16, S_WS, S_WS + 3, sT0))
        return C.vmem("  buffer_store_dwordx4 v[%d:%d], v%d, s[%d:%d], s%d offen offset:1024 sc1" % (src + 4, src + 7, vL16, S_WS, S_WS + 3, sT0))
    def finish_stats(self, vs, vm, vr):
        self.C.e("""  v_mul_f32 v{m}, 0x3b000000, v{s}
  v_mul_f32 v{q}, 0x3b000000, v{q}
  v_fma_f32 v{q}, -v{m}, v{m}, v{q}
  v_max_f32 v{q}, 0, v{q}
  v_add_f32 v{s}, 0x3727c5ac, v{q}
  v_rsq_f32 v{r}, v{s}""".format(m=vm, s=vs, q=vs + 1, r=vr))
        self.C.nop(1)

    def end_here(self):
        self.pump(10 ** 6)
        self.C.e("  s_waitcnt vmcnt(0) lgkmcnt(0)")
        self.D.e("  s_waitcnt vmcnt(0) lgkmcnt(0)")
        self.finish()
    def finish(self):
        for S in (self.C, self.D):
            if self.stamps:
                S.e("  s_memrealtime s[%d:%d]\n  s_waitcnt lgkmcnt(0)" % (sTime, sTime + 1))
                S.e("  v_writelane_b32 v%d, s%d, 62\n  v_writelane_b32 v%d, s%d, 63" % (vStamp, sRT0, vStamp, sTime))
                S.e("  s_lshl_b32 s%d, s2, 11\n  s_lshl_b32 s%d, s%d, 8\n  s_add_u32 s%d, s%d, s%d\n  s_add_u32 s%d, s%d, %d"
                    % (sT0, sT1, sW, sT0, sT0, sT1, sT0, sT0, STAMP_BASE))
                S.e("  v_lshlrev_b32 v%d, 2, v%d" % (vTmpA, vLane))
                S.e("  buffer_store_dword v%d, v%d, s[%d:%d], s%d offen" % (vStamp, vTmpA, S_WS, S_WS + 3, sT0))
            S.e("  s_endpgm")

    def build(self):
        C, D = self.C, self.D
        e = C.e; d = D.e; o = self.opts
        self.head = Stream("H"); h = self.head.e
        def W(name, srd, vd, base, stride, col, k0):
            return Chunk(name, "W", srd=srd, vd=vd, base=base, stride=stride, lit=col + k0 * stride)
        W1 = [W("W1_%d" % q, S_W1, lD1024, sB1024, 1024, 0, 128 * q) for q in range(4)]
        WK = [W("K_%d" % q, S_QKV, lD3072, sBqkv, 3072, 1024, 128 * q) for q in range(4)]
        WV = [W("V_%d" % q, S_QKV, lD3072, sBqkv, 3072, 2048, 128 * q) for q in range(4)]
        WQ = [W("Q_%d" % q, S_QKV, lD3072, sBqkv, 3072, 0, 128 * q) for q in range(4)]
        W2 = [W("W2_%d" % q, S_W2, lD1024, sB1024, 1024, 0, 128 * q) for q in range(4)]
        WO = [W("WO_%d" % q, S_WO, lD1024, sB1024, 1024, 0, 128 * q) for q in range(4)]
        W3 = [[W("W3_%d_%d" % (p, q), S_W3, lD2752, sB3, 2752, 128 * p, 128 * q) for q in range(4)] for p in range(3)]
        W4 = [[W("W4_%d_%d" % (p, pp), S_W4, lD1024, sB4, 1024, 0, 384 * pp + 64 * p) for pp in range(4)] for p in range(3)]
        shifts = [1, -1, 2, -2]
        def hpre(q):
            return ("  v_and_b32 v{t}, 31, v{l}\n  s_lshl_b32 s{a}, s{tb}, 5\n  s_add_u32 s{a}, s{a}, {dd}\n  v_add_u32 v{t}, s{a}, v{t}\n"
                    "  v_cmp_gt_u32 vcc, 0x800, v{t}\n"
                    "  v_lshrrev_b32 v{h}, 5, v{t}\n  v_lshlrev_b32 v{h}, 15, v{h}\n  v_and_b32 v{t}, 31, v{t}\n  v_lshl_add_u32 v{h}, v{t}, 4, v{h}\n"
                    "  v_and_b32 v{t}, 32, v{l}\n  v_lshl_add_u32 v{h}, v{t}, 4, v{h}\n  v_mov_b32 v{t}, 0x80000000\n  v_cndmask_b32 v{h}, v{t}, v{h}, vcc\n"
                    "  s_mov_b32 s{a}, 0\n"
                    ).format(t=lTmp, l=vLane, a=sT3, tb=sTB, dd=(-shifts[q]) & 0xffffffff, h=lHs)
        HC = [Chunk("H_%d" % q, "A", flag=F_H, base=sT3, lits=[H_BASE + q * 8192, H_BASE + q * 8192 + 4096], vo=lHs, pre=hpre(q)) for q in range(4)]
        X1C = [Chunk("X1_%d" % q, "A", flag=F_X1, base=sAct, lits=[X1_BASE + q * 8192, X1_BASE + q * 8192 + 4096]) for q in range(4)]
        OC = [Chunk("O_%d" % q, "A", flag=F_O, base=sAct, lits=[O_BASE + q * 8192, O_BASE + q * 8192 + 4096]) for q in range(4)]
        GC = [[Chunk("G_%d_%d" % (p, pp), "A", flag=F_G0 + p, base=sActG,
                     lits=[G_BASE + (24 * pp + 4 * p) * 1024, G_BASE + (24 * pp + 12 + 4 * p) * 1024]) for pp in range(4)] for p in range(3)]
        order = list(W1) + WQ
        for q in range(4): order += [W2[q], HC[q]]
        for q in range(4): order += [WK[q], WV[q]]
        for q in range(4): order += [X1C[q], W3[0][q]]
        order += W3[1] + W3[2]
        for p in range(3):
            for pp in range(4): order += [W4[p][pp], GC[p][pp]]
        for q in range(4): order += [WO[q], OC[q]]
        self.order = order
        self.free_slots = [0, 1, 2, 3, 4]

        h("  s_cmp_ge_u32 s2, 0x100\n  s_cbranch_scc1 Lexit")
        if self.stamps: h("  s_memrealtime s[%d:%d]" % (sRT0, sRT0 + 1))
        h("  s_load_dwordx16 s[80:95], s[0:1], 0\n  s_load_dwordx4 s[96:99], s[0:1], 64\n  s_load_dwordx2 s[100:101], s[0:1], 80")
        if o.get("map", 1) == 0:
            h("""  s_and_b32 s{t0}, s2, 7
  s_lshr_b32 s{t1}, s2, 3
  s_lshr_b32 s{c}, s{t1}, 3
  s_lshl_b32 s{t0}, s{t0}, 2
  s_add_u32 s{c}, s{c}, s{t0}
  s_and_b32 s{j}, s{t1}, 7""".format(t0=sT0, t1=sT1, c=sC, j=sJ))
        else:
            h("""  s_and_b32 s{t0}, s2, 6
  s_lshl_b32 s{t0}, s{t0}, 2
  s_lshr_b32 s{t1}, s2, 3
  s_lshr_b32 s{c}, s{t1}, 2
  s_add_u32 s{c}, s{c}, s{t0}
  s_and_b32 s{j}, s{t1}, 3
  s_and_b32 s{t0}, s2, 1
  s_lshl_b32 s{t0}, s{t0}, 2
  s_add_u32 s{j}, s{j}, s{t0}""".format(t0=sT0, t1=sT1, c=sC, j=sJ))
        h("""  s_xor_b32 s{j}, s{j}, {jx}
  v_lshrrev_b32 v{ta}, 6, v0
  v_and_b32 v{l}, 63, v0
  v_readfirstlane_b32 s{w}, v{ta}
  v_lshlrev_b32 v{l16}, 4, v{l}
  s_waitcnt lgkmcnt(0)""".format(j=sJ, ta=vTmpA, l=vLane, w=sW, l16=vL16, jx=o.get("jx", 0)))
        sizes = {S_X: (80, 2048 * 1024), S_QKV: (82, 512 * 3072), S_WO: (84, 512 * 1024), S_W1: (88, 512 * 1024), S_W2: (90, 512 * 1024),
                 S_W3: (92, 512 * 2752), S_W4: (94, 1376 * 1024), S_OUT: (96, 2048 * 1024), S_DBG: (98, 256), S_WS: (100, WS_SIZE)}
        for srd in (S_X, S_W1, S_WS, S_QKV, S_DBG, S_W2, S_W3, S_WO, S_W4, S_OUT):
            p, sz = sizes[srd]
            h("  s_mov_b32 s%d, s%d\n  s_mov_b32 s%d, s%d\n  s_mov_b32 s%d, %d\n  s_mov_b32 s%d, 0x00020000" % (srd, p, srd + 1, p + 1, srd + 2, sz, srd + 3))
        if self.stamps: h("  v_mov_b32 v%d, 0" % vStamp)
        h("  s_cmp_ge_u32 s%d, 4\n  s_cbranch_scc1 Lloader" % sW)


        def touch(srd, nlines_row, row_stride, col0, nrows):
            if not o.get("warm", 1): return
            total = nlines_row * nrows
            per_wg = -(-total // 256)
            assert per_wg <= 128
            d("""  s_mul_i32 s{t0}, s2, {pw}
  s_lshl_b32 s{t1}, s{i}, 5
  s_add_u32 s{t0}, s{t0}, s{t1}
  v_and_b32 v{a}, 31, v{l}
  v_add_u32 v{b}, s{t1}, v{a}
  v_add_u32 v{a}, s{t0}, v{a}
  v_cmp_gt_u32 vcc, {pw}, v{b}""".format(t0=sT0, t1=sT1, pw=per_wg, i=sI, a=lT + 10, b=lT + 11, l=vLane))
            if row_stride == nlines_row * 128:
                d("  v_lshlrev_b32 v%d, 7, v%d" % (lT + 10, lT + 10))
            else:
                assert nlines_row & (nlines_row - 1) == 0
                sh = nlines_row.bit_length() - 1
                d("""  v_lshrrev_b32 v{b}, {sh}, v{a}
  v_mul_u32_u24 v{b}, {rs}, v{b}
  v_and_b32 v{a}, {m}, v{a}
  v_lshl_add_u32 v{a}, v{a}, 7, v{b}""".format(a=lT + 10, b=lT + 11, sh=sh, rs=row_stride, m=nlines_row - 1))
            d("""  v_add_u32 v{a}, {c0}, v{a}
  v_mov_b32 v{b}, 0x80000000
  v_cndmask_b32 v{a}, v{b}, v{a}, vcc""".format(a=lT + 10, b=lT + 11, c0=col0))
            assert per_wg <= 64
            D.vmem("  buffer_load_dword v%d, v%d, s[%d:%d], 0 offen" % (19, lT + 10, srd, srd + 3))
        d("""  s_sub_u32 s{i}, s{w}, 4
  s_lshl_b32 s{tb}, s{c}, 1
  s_add_u32 s{tb}, s{tb}, s{i}
  s_lshl_b32 s{o}, s{c}, 16
  s_lshl_b32 s{t0}, s{i}, 15
  s_add_u32 s{o}, s{o}, s{t0}
  s_mul_i32 s{t0}, s{i}, {r32}
  s_add_u32 m0, s{t0}, {xb}""".format(i=sI, w=sW, tb=sTB, c=sC, o=sOff, t0=sT0, r32=32 * XSTRIDE, xb=XBASE))
        x_seq = None
        for t in range(32):
            pre = "  s_nop 0\n" if t == 0 else "  s_addk_i32 m0, %d\n  s_addk_i32 s%d, 1024\n" % (XSTRIDE, sOff)
            x_seq = D.vmem(pre + "  buffer_load_dwordx4 v%d, s[%d:%d], s%d offen lds" % (vL16, S_X, S_X + 3, sOff))
            if t == 1:
                d("""  s_lshl_b32 s{m0w}, s{i}, 13
  s_lshl_b32 s{t0}, s{j}, 7
  s_lshl_b32 s{b1}, s{i}, 16
  s_add_u32 s{b1}, s{b1}, s{t0}
  s_mul_i32 s{bq}, s{i}, {q64}
  s_add_u32 s{bq}, s{bq}, s{t0}
  s_mul_i32 s{b3}, s{i}, {w64}
  s_mul_i32 s{t1}, s{j}, 384
  s_add_u32 s{b3}, s{b3}, s{t1}
  s_mul_i32 s{b4}, s{i}, {f192}
  s_add_u32 s{b4}, s{b4}, s{t0}
  s_lshl_b32 s{act}, s{tb}, 15
  s_mul_i32 s{actg}, s{tb}, 98304
  v_lshrrev_b32 v{a}, 3, v{l}
  v_and_b32 v{b}, 7, v{l}
  v_lshrrev_b32 v{c}, 1, v{a}
  v_and_b32 v{c}, 1, v{c}
  v_lshlrev_b32 v{c}, 2, v{c}
  v_xor_b32 v{b}, v{b}, v{c}
  v_lshlrev_b32 v{b}, 4, v{b}
  v_lshl_add_u32 v{d1}, v{a}, 10, v{b}
  v_mul_u32_u24 v{d2}, 0xc00, v{a}
  v_add_u32 v{d2}, v{d2}, v{b}
  v_mul_u32_u24 v{d3}, 0xac0, v{a}
  v_add_u32 v{d3}, v{d3}, v{b}""".format(m0w=sM0w, i=sI, t0=sT0, t1=sT1, j=sJ, b1=sB1024, bq=sBqkv, q64=64 * 3072, b3=sB3, w64=64 * 2752, b4=sB4,
                                          f192=192 * 1024, act=sAct, tb=sTB, actg=sActG, a=lT, b=lT + 1, c=lT + 2, l=vLane, d1=lD1024, d2=lD3072, d3=lD2752))
        touch(S_W1, 4096, 4096 * 128, 0, 1)
        touch(S_QKV, 8, 3072, 0, 512)
        self.assign(); self.pump(o.get('b_pre', 520))

        B = vBig
        e("""  s_and_b32 s{i}, s{w}, 1
  s_lshr_b32 s{n}, s{w}, 1
  s_lshl_b32 s{tb}, s{c}, 1
  s_add_u32 s{tb}, s{tb}, s{i}
  v_and_b32 v{a}, 15, v{l}
  v_lshrrev_b32 v{r}, 2, v{a}
  v_and_b32 v{c_}, 3, v{l}
  v_bfe_u32 v{g}, v{l}, 4, 1
  v_lshrrev_b32 v{hf}, 5, v{l}
  v_lshrrev_b32 v{p}, 1, v{c_}
  v_lshl_add_u32 v{p}, v{g}, 1, v{p}
  s_lshl_b32 s{t0}, s{n}, 2
  v_add_u32 v{p}, s{t0}, v{p}
  v_lshrrev_b32 v{x}, 1, v{r}
  v_lshlrev_b32 v{x}, 2, v{x}
  v_xor_b32 v{p}, v{p}, v{x}
  v_and_b32 v{x}, 1, v{c_}
  v_lshlrev_b32 v{x}, 3, v{x}
  v_lshl_add_u32 v{p}, v{p}, 4, v{x}
  v_lshl_add_u32 v{x}, v{hf}, 3, v{r}
  v_lshl_add_u32 v{wn}, v{x}, 7, v{p}
  v_lshl_add_u32 v{x}, v{hf}, 2, v{r}
  v_lshl_add_u32 v{wc}, v{x}, 7, v{p}
  v_add_u32 v{wn1}, 0x10000, v{wn}
  v_add_u32 v{wn2}, 0x20000, v{wn}
  v_add_u32 v{wc1}, 0x10000, v{wc}
  v_add_u32 v{wc2}, 0x20000, v{wc}
  s_lshl_b32 s{t0}, s{i}, 13
  v_add_u32 v{a0}, s{t0}, v{l16}
  v_add_u32 v{a1}, 0x10000, v{a0}
  v_add_u32 v{a2}, 0x20000, v{a0}
  v_and_b32 v{m}, 31, v{l}
  s_lshl_b32 s{t0}, s{i}, 5
  v_add_u32 v{x}, s{t0}, v{m}
  v_mul_u32_u24 v{xa}, {xs}, v{x}
  v_lshl_add_u32 v{xa}, v{hf}, 4, v{xa}
  v_add_u32 v{xa}, {xb}, v{xa}
  s_lshl_b32 s{t0}, s{tb}, 15
  s_lshl_b32 s{t1}, s{j}, 7
  s_add_u32 s{t0}, s{t0}, s{t1}
  s_lshl_b32 s{t1}, s{n}, 6
  s_add_u32 s{t0}, s{t0}, s{t1}
  v_lshl_add_u32 v{oo}, v{m}, 10, s{t0}
  v_lshl_add_u32 v{oo}, v{hf}, 4, v{oo}
  v_lshlrev_b32 v{st}, 3, v{m}
  v_mov_b32 v{x}, 0x80000000
  v_cmp_gt_u32 vcc, 32, v{l}
  v_mov_b32 v{y}, 0
  s_nop 0
  v_cndmask_b32 v{st}, v{x}, v{st}, vcc
  v_cmp_eq_u32 vcc, 0, v0
  v_lshrrev_b32 v{sel}, 4, v{l}
  v_and_b32 v{sel}, 1, v{sel}
  v_cndmask_b32 v{fv}, v{x}, v{y}, vcc
  v_and_b32 v{y}, 3, v{l}
  v_cmp_eq_u32 vcc, v{y}, v{sel}
  v_mov_b32 v{x}, 0
  v_mov_b32 v{y}, 0x3f803f80
  v_cndmask_b32 v{sel}, v{x}, v{y}, vcc
  v_cndmask_b32 v{sel1}, v{x}, v{y}, vcc
  v_cndmask_b32 v{sel2}, v{x}, v{y}, vcc
  v_cndmask_b32 v{sel3}, v{x}, v{y}, vcc""".format(i=sI, w=sW, n=sN, tb=sTB, c=sC, j=sJ, a=B, r=B + 1, c_=B + 2, g=B + 3, hf=B + 4, p=B + 5,
                                                 x=B + 6, m=B + 7, y=B + 8, l=vLane, t0=sT0, t1=sT1, wn=vWn, wn1=vWn + 1, wn2=vWn + 2, wc=vWc, wc1=vWc + 1,
                                                 wc2=vWc + 2, a0=vA, a1=vA + 1, a2=vA + 2, l16=vL16, xa=vXA, xs=XSTRIDE, xb=XBASE, oo=vOutOff, st=vStOff, fv=vFlagV,
                                                 sel=vSel, sel1=vSel + 1, sel2=vSel + 2, sel3=vSel + 3))
        ZT = 100
        e("""  s_and_b32 s{t0}, s{c}, 7
  s_cmp_eq_u32 s{t0}, s{j}
  s_cselect_b32 s{t0}, 0, 1
  s_min_u32 s{t1}, s{w}, 1
  s_or_b32 s{t0}, s{t0}, s{t1}
  s_lshl_b32 s{z}, s{t0}, 31
  v_lshrrev_b32 v{a}, 3, v{l}
  v_lshlrev_b32 v{b}, 12, v{a}
  v_and_b32 v{c_}, 7, v{l}
  v_lshl_add_u32 v{b}, v{c_}, 4, v{b}
  s_lshl_b32 s{t0}, s{c}, 7
  s_lshr_b32 s{t1}, s{c}, 2
  s_lshl_b32 s{t1}, s{t1}, 7
  v_mov_b32 v{c_}, s{t0}
  v_mov_b32 v{d_}, s{t1}
  v_cmp_eq_u32 vcc, 6, v{a}
  v_mov_b32 v{z0}, 0
  v_mov_b32 v{z1}, 0
  v_cndmask_b32 v{c_}, v{c_}, v{d_}, vcc
  v_add_u32 v{b}, v{b}, v{c_}
  v_cmp_gt_u32 vcc, 7, v{a}
  v_mov_b32 v{d_}, 0x80000000
  v_mov_b32 v{z2}, 0
  v_cndmask_b32 v{b}, v{d_}, v{b}, vcc
  v_or_b32 v{b}, s{z}, v{b}
  v_mov_b32 v{z3}, 0
  s_mov_b32 s{t0}, {fl}""".format(t0=sT0, t1=sT1, c=sC, j=sJ, w=sW, z=sZero, a=ZT, b=ZT + 1, c_=ZT + 2, d_=ZT + 3, l=vLane,
                                   z0=ZT + 4, z1=ZT + 5, z2=ZT + 6, z3=ZT + 7, fl=FL_BASE))
        C.vmem("  buffer_store_dwordx4 v[%d:%d], v%d, s[%d:%d], s%d offen sc1" % (ZT + 4, ZT + 7, ZT + 1, S_WS, S_WS + 3, sT0))
        e("""  s_lshr_b32 s{t0}, s{c}, 2
  s_lshl_b32 s{t0}, s{t0}, 13
  s_and_b32 s{t1}, s{c}, 3
  s_lshl_b32 s{t1}, s{t1}, 11
  s_add_u32 s{t0}, s{t0}, s{t1}
  s_add_u32 s{t0}, s{t0}, {kv}
  v_or_b32 v{a}, s{z}, v{l16}
  v_cmp_eq_u32 vcc, 0, v{l}
  v_mov_b32 v{b}, s{z}
  v_mov_b32 v{d_}, 0x80000000
  v_cndmask_b32 v{fv}, v{d_}, v{b}, vcc""".format(t0=sT0, t1=sT1, c=sC, kv=KV_BASE, a=ZT, b=ZT + 1, d_=ZT + 3, z=sZero, l16=vL16, l=vLane, fv=ZT + 8))
        C.vmem("  buffer_store_dwordx4 v[%d:%d], v%d, s[%d:%d], s%d offen sc1" % (ZT + 4, ZT + 7, ZT, S_WS, S_WS + 3, sT0))
        init_seq = C.vmem("  buffer_store_dwordx4 v[%d:%d], v%d, s[%d:%d], s%d offen offset:1024 sc1" % (ZT + 4, ZT + 7, ZT, S_WS, S_WS + 3, sT0))
        C.wait_vm(init_seq)
        e("  v_mov_b32 v%d, 1\n  s_lshl_b32 s%d, s%d, 3" % (ZT, sT0, sC))
        C.vmem("  buffer_atomic_add v%d, v%d, s[%d:%d], s%d offen sc1" % (ZT, ZT + 8, S_DBG, S_DBG + 3, sT0))
        c0 = -2.0 * math.sqrt(2.0 / math.pi) * math.log2(math.e); c1 = c0 * 0.044715
        e("""  s_mov_b32 s{on}, 0x3f803f80
  s_mov_b32 s{mh}, 0xffff0000
  s_mov_b32 s{mh1}, 0xffff0000
  s_mov_b32 s{c1}, {c1v}
  s_mov_b32 s{c11}, {c1v}
  s_mov_b32 s{o}, 1.0
  s_mov_b32 s{o1}, 1.0
  s_mov_b32 s{lg}, {lgv}
  s_mov_b32 s{lg1}, {lgv}
  s_mov_b32 s{ep}, {epv}
  s_mov_b32 s{ep1}, {epv}
  s_mov_b32 s{hm}, 0xffff0000
  v_mov_b32 v{c0}, {c0v}
  v_mov_b32 v{c01}, {c0v}""".format(on=sOnes, mh=sMaskHi, mh1=sMaskHi + 1, c1=sC1, c11=sC1 + 1, c1v=fbits(c1), o=sOne, o1=sOne + 1,
                                    lg=sLog2e, lg1=sLog2e + 1, lgv=fbits(math.log2(math.e)), ep=sEps6, ep1=sEps6 + 1, epv=fbits(1e-6), hm=sHiMask,
                                    c0=vC0, c01=vC0 + 1, c0v=fbits(c0)))
        self.stamp("setup")

        self.cur = "x_in"
        self.barrier(dwait=x_seq, budget=0)
        if o.get("codepf", 1):
            d("""  s_getpc_b64 s[{p}:{p1}]
Lpc_here:
  s_sub_u32 s{p}, s{p}, (Lpc_here - {kn})
  s_subb_u32 s{p1}, s{p1}, 0
  s_lshr_b32 s{t0}, s2, 3
  s_lshl_b32 s{t0}, s{t0}, 5
  s_lshl_b32 s{t1}, s{i}, 4
  s_add_u32 s{t0}, s{t0}, s{t1}
  v_and_b32 v{ta}, 15, v{l}
  v_add_u32 v{ta}, s{t0}, v{ta}
  v_lshlrev_b32 v{ta}, 7, v{ta}
  v_min_u32 v{ta}, CODE_PF_MAX, v{ta}
  global_load_dword v{dd}, v{ta}, s[{p}:{p1}]""".format(p=sTime, p1=sTime + 1, kn=KNAME, ta=lTmp, l=vLane, t0=sT0, t1=sT1, i=sI, dd=lT + 8))
            D.vm_seq += 1
        touch(S_W2, 4096, 4096 * 128, 0, 1)
        self.pump(300)
        d("""  v_and_b32 v{pc}, 7, v{l}
  v_lshlrev_b32 v{pc}, 2, v{pc}
  v_and_b32 v{m}, 31, v{l}
  v_lshlrev_b32 v{pk}, 2, v{m}
  s_lshl_b32 s{t1}, s{j}, 7
  v_add_u32 v{pk}, s{t1}, v{pk}
  v_lshrrev_b32 v{x}, 3, v{l}
  v_min_u32 v{x}, 2, v{x}
  v_add_u32 v{x}, s{c}, v{x}
  v_max_u32 v{x}, 1, v{x}
  v_min_u32 v{x}, 32, v{x}
  v_subrev_u32 v{x}, 1, v{x}
  v_lshl_add_u32 v{ph}, v{x}, 7, v{pc}
  s_lshl_b32 s{t0}, s{c}, 7
  v_add_u32 v{pc}, s{t0}, v{pc}
  v_lshlrev_b32 v{pi}, 2, v{l}
  v_and_b32 v{x}, 1, v{l}
  v_cmp_eq_u32 vcc, 0, v{x}
  v_mov_b32 v{x}, 0
  v_mov_b32 v{y}, 1
  v_cndmask_b32 v{ex}, v{x}, v{y}, vcc
  s_cmp_eq_u32 s{i}, 0
  s_cselect_b32 s{t0}, 0, 0x80000000
  s_cselect_b32 s{t1}, -1, 0
  v_or_b32 v{pi}, s{t0}, v{pi}
  v_and_b32 v{ex}, s{t1}, v{ex}""".format(pc=lPC, pk=lPK, ph=lPH, pi=lPI, ex=lExp, l=vLane, m=lT, x=lT + 1, y=lT + 2, t0=sT0, t1=sT1, j=sJ, c=sC, i=sI))
        self.stamp("x_in")

        e("  s_lshl_b32 s%d, s%d, 9\n  v_add_u32 v%d, s%d, v%d" % (sT0, sN, vTmpA, sT0, vXA))
        S0 = vP0; T2 = vPq
        tseq = []
        for q in range(16):
            tseq.append(C.lds("  ds_read_b128 v[%d:%d], v%d offset:%d" % (vBig + 4 * q, vBig + 4 * q + 3, vTmpA, 32 * q)))
            if q == 7:
                e("  v_mov_b32 v%d, 0\n  v_mov_b32 v%d, 0\n  v_mov_b32 v%d, 0\n  v_mov_b32 v%d, 0" % (S0, S0 + 1, S0 + 2, S0 + 3))
        e("""  s_lshl_b32 s{t0}, s{j}, 7
  s_lshl_b32 s{t1}, s{n}, 6
  s_add_u32 s{t0}, s{t0}, s{t1}
  v_lshrrev_b32 v{x}, 5, v{l}
  v_lshlrev_b32 v{x}, 3, v{x}
  v_sub_u32 v{y}, v{xa}, v{x}
  v_add_u32 v{y}, s{t0}, v{y}""".format(t0=sT0, t1=sT1, j=sJ, n=sN, x=T2, y=T2 + 1, l=vLane, xa=vXA))
        for q in range(16):
            C.wait_lg(tseq[q])
            for dd in range(4):
                r = vBig + 4 * q + dd; k = 2 * (dd & 1)
                e("  v_dot2c_f32_bf16 v%d, s%d, v%d\n  v_dot2c_f32_bf16 v%d, v%d, v%d" % (S0 + k, sOnes, r, S0 + k + 1, r, r))
            if q == 3:
                for g in range(4):
                    C.lds("  ds_read_b64 v[%d:%d], v%d offset:%d" % (vXres + 2 * g, vXres + 2 * g + 1, T2 + 1, 16 * g))
        e("""  s_lshl_b32 s{t0}, s{i}, 1
  s_add_u32 s{t0}, s{t0}, s{n}
  s_lshl_b32 s{t0}, s{t0}, 8
  s_add_u32 s{t0}, s{t0}, {st}
  v_and_b32 v{x}, 31, v{l}
  v_lshl_add_u32 v{y}, v{x}, 3, s{t0}
  s_lshl_b32 s{t0}, s{i}, 9
  s_add_u32 s{t0}, s{t0}, {st}
  v_lshl_add_u32 v{z}, v{x}, 3, s{t0}""".format(t0=sT0, i=sI, n=sN, st=L_STAT, x=T2, y=T2 + 2, z=T2 + 3, l=vLane))
        e("  v_pk_add_f32 v[%d:%d], v[%d:%d], v[%d:%d]" % (S0, S0 + 1, S0, S0 + 1, S0 + 2, S0 + 3))
        self.hf_combine([S0, S0 + 1], [S0 + 2, S0 + 3])
        s_ = C.lds("  ds_write_b64 v%d, v[%d:%d]" % (T2 + 2, S0, S0 + 1))
        C.wait_lg(s_)
        self.cur = "xstat"
        self.barrier(budget=o.get("b_xstat", 520))
        touch(S_QKV, 16, 3072, 1024, 512)
        C.lds("  ds_read_b64 v[%d:%d], v%d" % (S0, S0 + 1, T2 + 3))
        s_ = C.lds("  ds_read_b64 v[%d:%d], v%d offset:256" % (S0 + 2, S0 + 3, T2 + 3))
        C.wait_lg(s_)
        e("  v_pk_add_f32 v[%d:%d], v[%d:%d], v[%d:%d]" % (S0, S0 + 1, S0, S0 + 1, S0 + 2, S0 + 3))
        self.finish_stats(S0, vM, vR)
        e("""  v_mul_f32 v{q}, v{q}, v{r}
  v_mul_f32 v{q}, v{q}, v{r}
  v_add_f32 v{q}, 0x3727c5ac, v{q}
  v_rsq_f32 v{q}, v{q}
  v_mul_f32 v{mr}, v{m}, v{r}
  v_mul_f32 v{r2}, v{r}, v{q}
  v_sub_f32 v{nm}, 0, v{m}""".format(q=S0 + 1, r=vR, mr=vMR, m=vM, r2=vR2, nm=vNM))
        e("""  s_lshl_b32 s{t0}, s{w}, 8
  s_add_u32 s{t0}, s{t0}, {rs}
  v_and_b32 v{x}, 31, v{l}
  v_lshl_add_u32 v{x}, v{x}, 2, s{t0}""".format(t0=sT0, w=sW, rs=L_RS, x=T2, l=vLane))
        C.lds("  ds_write_b32 v%d, v%d" % (T2, vR))
        C.lds("  ds_write_b32 v%d, v%d offset:128" % (T2, vM))
        self.stamp("xstats")

        def ks_list(n_steps=4, per=8): return [(t, k) for t in range(n_steps) for k in range(per)]
        RI = lambda base, j: base + 4 * (j % 3)
        RG = lambda base, j: "v[%d:%d]" % (RI(base, j), RI(base, j) + 3)
        AR = lambda g: "a[%d:%d]" % (4 * g, 4 * g + 3)
        def t1_steps(WC, acc, order, act=None):
            ks = []
            for (t, k) in ks_list():
                g = 8 * t + k
                def reads(j, t=t, k=k, g=g):
                    if act: act[0](t, k, g)
                    return self.read_w(WC[t], k, order, RI(ring0, j))
                def mf(j, g=g): self.mfma(acc, RG(ring0, j), AR(g), g == 0)
                def post(j, g=g): self.cs_mfma(csA, RG(ring0, j), g == 0)
                ex = act[1][t] if act and act[1] else []
                ks.append(dict(step=t, chunks=([WC[t]] + ex) if k == 0 else None, reads=reads, mfma=mf, post=post, done=([WC[t]] + ex) if k == 7 else []))
            return ks
        def t2_steps(WC, AC, acc, nks=None, first0=True):
            ks = []; g = 0
            for t in range(len(WC)):
                per = 8 if nks is None else nks[t]
                for k in range(per):
                    def reads(j, t=t, k=k):
                        self.read_a(AC[t], k, RG(ring1, j))
                        return self.read_w(WC[t], k, "cd", RI(ring0, j))
                    def mf(j, g=g): self.mfma(acc, RG(ring0, j), RG(ring1, j), first0 and g == 0)
                    ks.append(dict(step=t, chunks=[WC[t], AC[t]] if k == 0 else None, reads=reads, mfma=mf, done=[WC[t], AC[t]] if k == per - 1 else []))
                    g += 1
            return ks

        xact = (lambda t, k, g: C.lds("  ds_read_b128 a[%d:%d], v%d offset:%d" % (4 * g, 4 * g + 3, vXA, 32 * g)), None)
        self.gemm("S1", t1_steps(W1, accA, "nat", act=xact), release=0, budget=o.get("b_s1", 420),
                  hooks={1: [lambda: self.poll_issue("init"), lambda: touch(S_W3, 11008, 11008 * 128, 0, 1)], 3: [lambda: self.poll_check("init")]})
        self.free_slots += [5, 6, 7, 8]; self.assign(); self.pump(o.get("b_s1e", 850))
        self.stamp("S1m")
        C.nop(11)
        self.rescale(accA, vNM, vR2)
        self.gelu_pack(accA, vP0, ZA)
        if o.get("fine"): self.stamp("S1gelu")
        self.store_frags(vP0, H_BASE, 32768, (4, 0))
        if o.get("fine") == 2:
            self.stamp("S1st"); C.wait_vm(C.vm_seq); self.stamp("S1drain")
        self.signal_later(F_H, delay=o.get("h_delay", 1))
        self.stamp("S1e")
        if self.stop == "S1":
            self.barrier(flush_sig=True); return self.end_here()

        self.gemm("S4", t1_steps(WQ, accA, "nat"), budget=o.get("b_s4", 420),
                  hooks={0: [lambda: touch(S_WO, 4096, 4096 * 128, 0, 1)], 1: [lambda: touch(S_W4, 11008, 11008 * 128, 0, 1)]})
        self.stamp("S4m")
        self.poll(F_H); self.pump(o.get("b_h", 1100))
        C.nop(12)
        self.rescale(accA, vNM, vR)
        self.phi_pack(accA, vPq, ZA)
        self.stamp("S4e")

        self.gemm("S3", t2_steps(W2, HC, accA), budget=o.get("b_s3", 560), release=o.get("b_s3e", 650))
        self.stamp("S3m")
        U = ZA
        for dd in range(8):
            e("  v_lshlrev_b32 v%d, 16, v%d\n  v_and_b32 v%d, s%d, v%d" % (U + 2 * dd, vXres + dd, U + 2 * dd + 1, sHiMask, vXres + dd))
        for p in range(8):
            a = accA + 2 * p
            e("  v_pk_fma_f32 v[%d:%d], v[%d:%d], v[%d:%d], v[%d:%d] op_sel_hi:[1,0,1]" % (a, a + 1, U + 2 * p, U + 2 * p + 1, vR, vR + 1, a, a + 1))
        for p in range(8):
            a = accA + 2 * p
            e("  v_pk_add_f32 v[%d:%d], v[%d:%d], v[%d:%d] op_sel_hi:[1,0] neg_lo:[0,1] neg_hi:[0,1]" % (a, a + 1, a, a + 1, vMR, vMR + 1))
        for p in range(8): e("  v_cvt_pk_bf16_f32 v%d, v%d, v%d" % (vX1res + p, accA + 2 * p, accA + 2 * p + 1))
        self.store_frags(vX1res, X1_BASE, 32768, (4, 0))
        T = vP0
        e("  v_mov_b32 v%d, 0\n  v_mov_b32 v%d, 0" % (T, T + 1))
        for p in range(8):
            e("  v_dot2c_f32_bf16 v%d, s%d, v%d\n  v_dot2c_f32_bf16 v%d, v%d, v%d" % (T, sOnes, vX1res + p, T + 1, vX1res + p, vX1res + p))
        e("""  s_lshl_b32 s{t0}, s{tb}, 12
  s_lshl_b32 s{t1}, s{j}, 9
  s_add_u32 s{t0}, s{t0}, s{t1}
  s_lshl_b32 s{t1}, s{n}, 8
  s_add_u32 s{t0}, s{t0}, s{t1}
  s_add_u32 s{t0}, s{t0}, {st}""".format(t0=sT0, t1=sT1, tb=sTB, j=sJ, n=sN, st=ST1_BASE))
        self.hf_combine([T, T + 1], [T + 2, T + 3])
        C.vmem("  buffer_store_dwordx2 v[%d:%d], v%d, s[%d:%d], s%d offen sc1" % (T, T + 1, vStOff, S_WS, S_WS + 3, sT0))
        self.signal_later(F_X1, delay=o.get("x1_delay", 1))
        self.stamp("S3e")
        if self.stop == "S3":
            self.barrier(flush_sig=True); return self.end_here()

        aux = {}
        def load_aux_x1():
            d("  s_lshl_b32 s%d, s%d, 12\n  s_add_u32 s%d, s%d, %d\n  s_lshl_b32 s%d, s%d, 12\n  s_add_u32 m0, s%d, %d"
              % (sT0, sTB, sOff, sT0, ST1_BASE, sT1, sI, sT1, L_ST1))
            d("  s_nop 0")
            for t in range(4):
                aux["st1"] = D.vmem("  buffer_load_dwordx4 v%d, s[%d:%d], s%d offen offset:%d sc1 lds" % (vL16, S_WS, S_WS + 3, sOff, 1024 * t))
        def load_aux_kv():
            d("  s_lshl_b32 s%d, s%d, 13\n  s_lshl_b32 s%d, s%d, 12\n  s_add_u32 s%d, s%d, s%d\n  s_add_u32 s%d, s%d, %d\n  s_mul_i32 s%d, s%d, 3072\n  s_add_u32 m0, s%d, %d"
              % (sT0, sJ, sT1, sI, sT0, sT0, sT1, sOff, sT0, KV_BASE, sT1, sI, sT1, L_KV))
            d("  s_nop 0")
            for t in range(3):
                aux["kv"] = D.vmem("  buffer_load_dwordx4 v%d, s[%d:%d], s%d offen offset:%d sc1 lds" % (vL16, S_WS, S_WS + 3, sOff, 1024 * t))
        ks = []
        for (t, k) in ks_list():
            g = 8 * t + k
            def reads(j, t=t, k=k):
                self.read_w(WK[t], k, "nat", RI(ring0, j))
                return self.read_w(WV[t], k, "nat", RI(ring1, j))
            def mf(j, g=g): self.mfma(accA, AR(g), RG(ring0, j), g == 0)
            def post(j, g=g):
                self.mfma(accB, AR(g), RG(ring1, j), g == 0)
                self.cs_mfma(csA, RG(ring0, j), g == 0)
                self.cs_mfma(csB, RG(ring1, j), g == 0)
            ks.append(dict(step=t, chunks=[WK[t], WV[t]] if k == 0 else None, reads=reads, mfma=mf, post=post, done=[WK[t], WV[t]] if k == 7 else []))
        self.gemm("S2", ks, budget=[o.get("b_s2", 800)] * 3 + [0], release=o.get("b_s2e", 1300),
                  hooks={2: [lambda: self.poll_issue(F_X1)], 3: [lambda: self.poll_check(F_X1), lambda: self.pump(520), load_aux_x1]})
        self.stamp("S2m")
        e("""  s_lshl_b32 s{t0}, s{w}, 8
  s_add_u32 s{t0}, s{t0}, {rs}
  v_lshrrev_b32 v{x}, 5, v{l}
  v_lshl_add_u32 v{x}, v{x}, 4, s{t0}""".format(t0=sT0, w=sW, rs=L_RS, x=vTmpA, l=vLane))
        C.nop(6)
        CK, CV = vP0, vP0 + 2
        e("  v_cndmask_b32 v%d, v%d, v%d, s[%d:%d]" % (CK, csA, csA + 1, sMaskHi, sMaskHi + 1))
        e("  v_cndmask_b32 v%d, v%d, v%d, s[%d:%d]" % (CV, csB, csB + 1, sMaskHi, sMaskHi + 1))
        for g in range(4):
            C.lds("  ds_read_b128 v[%d:%d], v%d offset:%d" % (ZB + 4 * g, ZB + 4 * g + 3, vTmpA, 128 + 32 * g))
        for g in range(4):
            s_ = C.lds("  ds_read_b128 v[%d:%d], v%d offset:%d" % (ZA + 4 * g, ZA + 4 * g + 3, vTmpA, 32 * g))
        C.wait_lg(s_)
        for acc, cs in ((accA, CK), (accB, CV)):
            for p in range(8):
                a = acc + 2 * p
                e("  v_pk_fma_f32 v[%d:%d], v[%d:%d], v[%d:%d], v[%d:%d] op_sel_hi:[1,0,1] neg_lo:[0,1,0] neg_hi:[0,1,0]"
                  % (a, a + 1, ZB + 2 * p, ZB + 2 * p + 1, cs, cs + 1, a, a + 1))
            for p in range(8):
                a = acc + 2 * p
                e("  v_pk_mul_f32 v[%d:%d], v[%d:%d], v[%d:%d]" % (a, a + 1, a, a + 1, ZA + 2 * p, ZA + 2 * p + 1))
        vPk, vVp = vP0, accB
        for p in range(8): e("  v_cvt_pk_bf16_f32 v%d, v%d, v%d" % (vVp + p, accB + 2 * p, accB + 2 * p + 1))
        self.phi_pack(accA, vPk, ZB)
        C.nop(2)
        KVD = ZA
        self.mfma(KVD, "v[%d:%d]" % (vPk, vPk + 3), "v[%d:%d]" % (vVp, vVp + 3), True)
        self.mfma(KVD, "v[%d:%d]" % (vPk + 4, vPk + 7), "v[%d:%d]" % (vVp + 4, vVp + 7), False)
        Z = accB + 8
        KH = accB
        KT = ring1
        e("""  v_mov_b32 v{z}, 0
  s_mul_i32 s{t0}, s{n}, 2304
  s_add_u32 s{t0}, s{t0}, {kx}
  s_xor_b32 s{t1}, s{i}, 1
  s_lshl_b32 s{t1}, s{t1}, 18
  s_add_u32 s{t0}, s{t0}, s{t1}
  v_add_u32 v{a}, s{t0}, v{l16}
  v_lshl_add_u32 v{b}, v{l}, 2, s{t0}""".format(z=Z, t0=sT0, t1=sT1, n=sN, i=sI, kx=L_KX, a=Z + 1, b=Z + 2, l16=vL16, l=vLane).replace("XX", ""))
        C.nop(10)
        for r in range(8):
            e("  v_cndmask_b32 v%d, v%d, v%d, s[%d:%d]" % (KH + r, KVD + r, KVD + 8 + r, sMaskHi, sMaskHi + 1))
        for p in range(8): e("  v_dot2c_f32_bf16 v%d, s%d, v%d" % (Z, sOnes, vPk + p))
        C.lds("  ds_write_b128 v%d, v[%d:%d]" % (Z + 1, KH, KH + 3))
        C.lds("  ds_write_b128 v%d, v[%d:%d] offset:1024" % (Z + 1, KH + 4, KH + 7))
        C.nop(1)
        s_ = C.lds("  ds_write_b32 v%d, v%d offset:2048" % (Z + 2, Z))
        C.wait_lg(s_)
        kvx = {}
        def kv_fetch():
            e("""  s_mul_i32 s{t0}, s{n}, 2304
  s_add_u32 s{t0}, s{t0}, {kx}
  v_add_u32 v{a}, s{t0}, v{l16}
  v_lshl_add_u32 v{b}, v{l}, 2, s{t0}""".format(t0=sT0, n=sN, kx=L_KX, a=KH + 9, b=KH + 10, l=vLane, l16=vL16))
            C.lds("  ds_read_b128 v[%d:%d], v%d" % (KT, KT + 3, KH + 9))
            C.lds("  ds_read_b128 v[%d:%d], v%d offset:1024" % (KT + 4, KT + 7, KH + 9))
            kvx["seq"] = C.lds("  ds_read_b32 v%d, v%d offset:2048" % (KT + 8, KH + 10))
        def kv_sum():
            C.wait_lg(kvx["seq"])
            for p in range(4):
                e("  v_pk_add_f32 v[%d:%d], v[%d:%d], v[%d:%d]" % (KH + 2 * p, KH + 2 * p + 1, KH + 2 * p, KH + 2 * p + 1, KT + 2 * p, KT + 2 * p + 1))
            e("  v_add_f32 v%d, v%d, v%d" % (KH + 8, KH + 8, KT + 8))
            e("""  s_lshl_b32 s{t0}, s{j}, 13
  s_lshl_b32 s{t1}, s{n}, 12
  s_add_u32 s{t0}, s{t0}, s{t1}
  s_add_u32 s{kb}, s{t0}, {kv}
  s_lshl_b32 s{t1}, s{i}, 31
  v_lshl_or_b32 v{a}, v{l}, 2, s{t1}
  v_and_b32 v{b}, 31, v{l}
  v_lshl_or_b32 v{b}, v{b}, 2, s{t1}""".format(t0=sT0, t1=sT1, j=sJ, n=sN, kb=sKvB, kv=KV_BASE, i=sI, a=KH + 9, b=KH + 10, l=vLane))
        def kv_atomic(k):
            if k < 8:
                C.vmem("  buffer_atomic_add_f32 v%d, v%d, s[%d:%d], s%d offen offset:%d sc1" % (KH + k, KH + 9, S_WS, S_WS + 3, sKvB, 256 * k))
            else:
                C.vmem("  buffer_atomic_add_f32 v%d, v%d, s[%d:%d], s%d offen offset:2048 sc1" % (KH + 8, KH + 10, S_WS, S_WS + 3, sKvB))
                self.signal_later(F_KV, delay=o.get("kv_delay", 3))
        sp = o.get("kv_space", 3)
        kv_extras = {0: kv_fetch, 2: kv_sum}
        for k in range(9): kv_extras[4 + sp * k] = (lambda k=k: kv_atomic(k))
        self.stamp("S2e")
        if self.stop == "S2":
            self.barrier(); kv_fetch(); kv_sum()
            for k in range(9): kv_atomic(k)
            self.barrier(flush_sig=True); return self.end_here()

        for p in range(3):
            if p == 0:
                x1act = (lambda t, k, g: self.read_a(X1C[t], k, AR(g)), [[X1C[t]] for t in range(4)])
                self.gemm("S5_0", t1_steps(W3[0], accA, "cd", act=x1act), budget=o.get("b_s5", 420), release=o.get("b_s5e", 950), extras=kv_extras,
                          dwait0=lambda: aux["st1"])
            elif p == 1:
                self.gemm("S5_1", t1_steps(W3[1], accA, "cd"), budget=o.get("b_s5", 420), release=o.get("b_s5e", 950))
            else:
                self.gemm("S5_2", t1_steps(W3[2], accA, "cd"), budget=o.get("b_s5", 420), release=o.get("b_s5e", 950),
                          hooks={0: [lambda: self.poll_issue(F_G0)], 3: [lambda: self.poll_check(F_G0)]}, rel_hooks=[lambda: self.poll_issue(F_KV)])
            self.stamp("S5m%d" % p)
            if p == 0:
                e("""  v_and_b32 v{a}, 31, v{l}
  v_lshlrev_b32 v{a}, 3, v{a}
  v_lshrrev_b32 v{b}, 5, v{l}
  v_lshl_add_u32 v{a}, v{b}, 11, v{a}
  s_lshl_b32 s{t0}, s{i}, 12
  s_add_u32 s{t0}, s{t0}, {st}
  v_add_u32 v{a}, s{t0}, v{a}""".format(a=vTmpA, b=vStOff, l=vLane, t0=sT0, i=sI, st=L_ST1))
                for q in range(8):
                    s_ = C.lds("  ds_read_b64 v[%d:%d], v%d offset:%d" % (ZA + 2 * q, ZA + 2 * q + 1, vTmpA, 256 * q))
                C.wait_lg(s_)
                for q in range(1, 8):
                    e("  v_pk_add_f32 v[%d:%d], v[%d:%d], v[%d:%d]" % (ZA, ZA + 1, ZA, ZA + 1, ZA + 2 * q, ZA + 2 * q + 1))
                self.hf_combine([ZA, ZA + 1], [ZA + 2, ZA + 3])
                self.finish_stats(ZA, vM1, vR1)
                e("  v_sub_f32 v%d, 0, v%d" % (vNM1, vM1))
            C.nop(11 if p else 2)
            self.rescale(accA, vNM1, vR1)
            self.gelu_pack(accA, vP0, ZA)
            self.store_frags(vP0, G_BASE, 98304, (12, 4 * p))
            self.signal_later(F_G0 + p, delay=o.get("g_delay", 2))
            self.stamp("S5e%d" % p)
        def o_step():
            P = vP0
            vKv, vZ = accA, accA + 8
            e("""  s_mul_i32 s{t0}, s{n}, 3072
  s_add_u32 s{t0}, s{t0}, {kv}
  v_lshl_add_u32 v{a}, v{l}, 2, s{t0}
  v_bfe_u32 v{b}, v{l}, 4, 1
  v_lshlrev_b32 v{b}, 6, v{b}
  v_lshrrev_b32 v{c}, 5, v{l}
  v_lshl_add_u32 v{b}, v{c}, 4, v{b}
  v_add_u32 v{b}, s{t0}, v{b}""".format(t0=sT0, n=sN, kv=L_KV, a=vTmpA, b=vStOff, c=vXA, l=vLane))
            for r in range(8):
                C.lds("  ds_read_b32 v%d, v%d offset:%d" % (vKv + r, vTmpA, 256 * r))
            C.lds("  ds_read_b128 v[%d:%d], v%d offset:2048" % (vZ, vZ + 3, vStOff))
            kv_seq = C.lds("  ds_read_b128 v[%d:%d], v%d offset:2080" % (vZ + 4, vZ + 7, vStOff))
            e("  v_mov_b32 v%d, 0" % vTmpA)
            C.wait_lg(kv_seq)
            for dd in range(4):
                e("  v_cvt_pk_bf16_f32 v%d, v%d, v%d" % (P + dd, vKv + 2 * dd, vKv + 2 * dd + 1))
                e("  v_cvt_pk_bf16_f32 v%d, v%d, v%d" % (P + 4 + dd, vZ + 2 * dd, vZ + 2 * dd + 1))
            MA = ZB
            for dd in range(8):
                e("  v_cndmask_b32 v%d, v%d, v%d, s[%d:%d]" % (MA + dd, P + dd, vTmpA, sMaskHi, sMaskHi + 1))
                e("  v_cndmask_b32 v%d, v%d, v%d, s[%d:%d]" % (MA + 8 + dd, vTmpA, P + dd, sMaskHi, sMaskHi + 1))
            C.nop(2)
            R_ = lambda a: "v[%d:%d]" % (a, a + 3)
            self.mfma(accA, R_(MA), R_(vPq), True)
            self.mfma(ZA, R_(MA + 4), R_(vPq), True)
            self.mfma(accA, R_(MA + 8), R_(vPq + 4), False)
            self.mfma(ZA, R_(MA + 12), R_(vPq + 4), False)
            C.nop(16)
            e("  v_add_f32 v{a}, 0x358637bd, v{d0}\n  v_add_f32 v{b}, 0x358637bd, v{d1}\n  v_rcp_f32 v{a}, v{a}\n  v_rcp_f32 v{b}, v{b}".format(a=P, b=P + 2, d0=ZA, d1=ZA + 8))
            C.nop(1)
            for p in range(8):
                a = accA + 2 * p; r = P if p < 4 else P + 2
                e("  v_pk_mul_f32 v[%d:%d], v[%d:%d], v[%d:%d] op_sel_hi:[1,0]" % (a, a + 1, a, a + 1, r, r + 1))
            for p in range(8): e("  v_cvt_pk_bf16_f32 v%d, v%d, v%d" % (vPq + p, accA + 2 * p, accA + 2 * p + 1))
            self.store_frags(vPq, O_BASE, 32768, (4, 0))
            self.signal_later(F_O, delay=o.get("o_delay", 2))
            self.stamp("ostep")
        if self.stop == "S5":
            self.barrier(flush_sig=True); self.poll(F_KV); load_aux_kv(); self.barrier(dwait=aux["kv"]); o_step()
            self.barrier(flush_sig=True); return self.end_here()

        nks = {0: [8, 8, 8, 6], 1: [8, 8, 8, 4], 2: [8, 8, 8, 4]}
        bt = o.get("b_t2", 560)
        def kvchk():
            self.poll_check(F_KV); load_aux_kv()
        self.gemm("S7_0", t2_steps(W4[0], GC[0], accF, nks=nks[0], first0=True), budget=bt, release=o.get("b_s70e", 750),
                  hooks={0: [lambda: self.poll_issue(F_G1)], 1: [kvchk], 2: [lambda: self.poll_check(F_G1)]},
                  dwait_rel=lambda: aux["kv"])
        self.stamp("S7m0")
        o_step()
        self.gemm("S7_1", t2_steps(W4[1], GC[1], accF, nks=nks[1], first0=False), budget=bt,
                  hooks={0: [lambda: self.poll_issue(F_G2)], 2: [lambda: self.poll_check(F_G2)]})
        self.stamp("S7m1")
        self.gemm("S7_2", t2_steps(W4[2], GC[2], accF, nks=nks[2], first0=False), budget=bt,
                  hooks={0: [lambda: self.poll_issue(F_O)], 2: [lambda: self.poll_check(F_O)]})
        self.stamp("S7m2")
        self.gemm("S6", t2_steps(WO, OC, accF, first0=False), budget=bt)
        self.stamp("S6m")
        U = ZA; X = ZB
        for dd in range(8):
            e("  v_lshlrev_b32 v%d, 16, v%d\n  v_and_b32 v%d, s%d, v%d" % (U + 2 * dd, vXres + dd, U + 2 * dd + 1, sHiMask, vXres + dd))
            e("  v_lshlrev_b32 v%d, 16, v%d\n  v_and_b32 v%d, s%d, v%d" % (X + 2 * dd, vX1res + dd, X + 2 * dd + 1, sHiMask, vX1res + dd))
        for p in range(8):
            e("  v_pk_add_f32 v[%d:%d], v[%d:%d], v[%d:%d]" % (U + 2 * p, U + 2 * p + 1, U + 2 * p, U + 2 * p + 1, X + 2 * p, X + 2 * p + 1))
        for p in range(8):
            a = accF + 2 * p
            e("  v_pk_add_f32 v[%d:%d], v[%d:%d], v[%d:%d]" % (a, a + 1, a, a + 1, U + 2 * p, U + 2 * p + 1))
        Dd = vP0
        for p in range(8): e("  v_cvt_pk_bf16_f32 v%d, v%d, v%d" % (Dd + p, accF + 2 * p, accF + 2 * p + 1))
        C.nop(2)
        for gp in range(2):
            e("  v_permlane32_swap_b32 v%d, v%d\n  v_permlane32_swap_b32 v%d, v%d" % (Dd + 4 * gp, Dd + 4 * gp + 2, Dd + 4 * gp + 1, Dd + 4 * gp + 3))
        C.nop(1)
        for gp in range(2):
            C.vmem("  buffer_store_dwordx4 v[%d:%d], v%d, s[%d:%d], 0 offen offset:%d" % (Dd + 4 * gp, Dd + 4 * gp + 3, vOutOff, S_OUT, S_OUT + 3, 32 * gp))
        self.stamp("end")
        self.finish()

    def text(self):
        self.build()
        hdr = open("cdna_kernels/%s.s.ref" % KNAME.replace("_kernel", "")).read().split("\n")
        head = []
        for l in hdr:
            if l.startswith("; @launch"): head.append("; @launch grid=(256,1,1) block=(384,1,1) lds=%d" % LDS_BYTES)
            elif l.startswith(";"): head.append(l)
            else: break
        t = "\n".join(head) + "\n"
        t += '.amdgcn_target "amdgcn-amd-amdhsa--gfx950"\n.text\n.globl %s\n.p2align 8\n.type %s,@function\n%s:\n' % (KNAME, KNAME, KNAME)
        t += "\n".join(self.head.L) + "\n" + "\n".join(self.C.L) + "\n.p2align 6\nLloader:\n" + "\n".join(self.D.L) + "\n" + "\n".join(self.tail)
        t += "\nLexit:\n  s_endpgm\nLcode_end:\n"
        t = t.replace("CODE_PF_MAX", "(Lcode_end - %s - 4)" % KNAME)
        t += """.section .rodata,"a"
.p2align 6
.amdhsa_kernel %s
  .amdhsa_next_free_vgpr 256
  .amdhsa_next_free_sgpr 102
  .amdhsa_accum_offset 128
  .amdhsa_group_segment_fixed_size 0
  .amdhsa_kernarg_size 88
  .amdhsa_user_sgpr_count 2
  .amdhsa_user_sgpr_kernarg_segment_ptr 1
  .amdhsa_system_sgpr_workgroup_id_x 1
  .amdhsa_float_denorm_mode_32 3
.end_amdhsa_kernel
""" % KNAME
        return t


if __name__ == "__main__":
    import argparse
    ap = argparse.ArgumentParser()
    ap.add_argument("-o", default="k.s")
    ap.add_argument("--stop", default=None)
    ap.add_argument("--stamps", action="store_true")
    ap.add_argument("--trace", action="store_true")
    ap.add_argument("--opt", action="append", default=[])
    a = ap.parse_args()
    opts = {}
    for kv in a.opt:
        k, v = kv.split("="); opts[k] = int(v)
    g = Gen(stop=a.stop, stamps=a.stamps, opts=opts)
    t = g.text()
    open(a.o, "w").write(t)
    open(a.o + ".stamps", "w").write("\n".join(g.stamp_names) + "\n--\n" + "\n".join(g.lstamp_names[:60]))
    if a.trace: print("\n".join(g.trace))
    print("lines", len(t.split("\n")), "stamps", len(g.stamp_names), "barriers", g.nbar)
```
